```python
import torch

def _softmax(x, axis=-1):
    return torch.softmax(x, dim=axis)
def _gelu(x):
    return torch.nn.functional.gelu(x, approximate="tanh")
def _silu(x):
    return torch.nn.functional.silu(x)
def _sigmoid(x):
    return torch.sigmoid(x)
def _layernorm(x, axis=-1, eps=1e-5):
    m = x.mean(dim=axis, keepdim=True)
    v = x.var(dim=axis, keepdim=True, unbiased=False)
    return (x - m) / torch.sqrt(v + eps)
def _scatter_add(tgt, idx, src, axis=0):
    return tgt.clone().index_add_(axis, idx, src)
def _segment_sum(src, seg, n):
    out = torch.zeros((n,) + src.shape[1:], dtype=src.dtype)
    return out.index_add_(0, seg, src)
def _pad(x, pw):
    flat = tuple(v for pair in reversed(pw) for v in pair)
    return torch.nn.functional.pad(x, flat)

kernel_name = 'interleave_layers__mha_block_cached__compressed_kv_cla__decode'

def setup_inputs():

    _w = (lambda a: (lambda t: t.to(torch.bfloat16) if t.is_floating_point() else t)(torch.as_tensor(a)))
    def _A_setup():
        B, Sq, D = 1, 1, 576
        H, Sk, Dh = 32, 8192, 128
        return {
            "x": _w((lambda *s: torch.randn(*s, dtype=torch.bfloat16) * 0.05)(B, Sq, D)),
            "k_cache": _w((lambda *s: torch.randn(*s, dtype=torch.bfloat16) * 0.8)(B, H, Sk, Dh)),
            "v_cache": _w((lambda *s: torch.randn(*s, dtype=torch.bfloat16) * 1.6)(B, H, Sk, Dh)),
            "wq": _w((lambda *s: torch.randn(*s, dtype=torch.bfloat16) * 0.8)(D, H * Dh) * (D ** -0.5)),
            "wo": _w((lambda *s: torch.randn(*s, dtype=torch.bfloat16) * 1.6)(H * Dh, D) * ((H * Dh) ** -0.5)),
        }
    _A_in = _A_setup()

    def _B_setup():
        B, H, Sq, Sk, D, M = 1, 32, 1, 8192, 128, 576
        Dc = 4 * D
        return {
            "x": _w((lambda *s: torch.randn(*s, dtype=torch.bfloat16) * 0.05)(B, Sq, M)),
            "c_kv": _w((lambda *s: torch.randn(*s, dtype=torch.bfloat16) * 0.4)(B, Sk, Dc)),
            "w_q": _w((lambda *s: torch.randn(*s, dtype=torch.bfloat16) * 3.2)(M, H, D) * (M ** -0.5)),
            "w_uk": _w((lambda *s: torch.randn(*s, dtype=torch.bfloat16) * 3.2)(Dc, H, D) * (Dc ** -0.5)),
            "w_uv": _w((lambda *s: torch.randn(*s, dtype=torch.bfloat16) * 0.4)(Dc, H, D) * (Dc ** -0.5)),
            "w_o": _w((lambda *s: torch.randn(*s, dtype=torch.bfloat16) * 0.4)(H, D, M) * ((H * D) ** -0.5)),
        }
    _B_in = _B_setup()

    return {
        "A_x": _A_in["x"],
        "A_k_cache": _A_in["k_cache"],
        "A_v_cache": _A_in["v_cache"],
        "A_wq": _A_in["wq"],
        "A_wo": _A_in["wo"],
        "B_x": _B_in["x"],
        "B_c_kv": _B_in["c_kv"],
        "B_w_q": _B_in["w_q"],
        "B_w_uk": _B_in["w_uk"],
        "B_w_uv": _B_in["w_uv"],
        "B_w_o": _B_in["w_o"],
    }

def reference(A_x, A_k_cache, A_v_cache, A_wq, A_wo, B_x, B_c_kv, B_w_q, B_w_uk, B_w_uv, B_w_o):
    def _A_ref(x, k_cache, v_cache, wq, wo):
        B, Sq, D = x.shape
        H, Dh = 32, 128
        q = (lambda x, *d: x.permute(*d))((x @ wq).reshape(B, Sq, H, Dh), 0, 2, 1, 3)
        scores = torch.einsum("bhqd,bhkd->bhqk", q, k_cache) * (Dh ** -0.5)
        p = _softmax(scores, axis=-1)
        o = torch.einsum("bhqk,bhkd->bhqd", p, v_cache)
        return (lambda x, *d: x.permute(*d))(o, 0, 2, 1, 3).reshape(B, Sq, H * Dh) @ wo

    def _B_ref(x, c_kv, w_q, w_uk, w_uv, w_o):
        B, Sq, M = x.shape[0], x.shape[1], x.shape[2]
        Sk = c_kv.shape[1]
        H, D = w_q.shape[1], w_q.shape[2]
        q = torch.einsum("bqm,mhd->bhqd", x, w_q)
        k = torch.einsum("bkc,chd->bhkd", c_kv, w_uk)
        v = torch.einsum("bkc,chd->bhkd", c_kv, w_uv)
        scores = torch.einsum("bhqd,bhkd->bhqk", q, k) * (D ** -0.5)
        off = Sk - Sq
        qi = torch.arange(Sq)[:, None]
        kj = torch.arange(Sk)[None, :]
        cmask = kj <= (qi + off)
        scores = torch.where(cmask[None, None], scores, -1e9)
        p = _softmax(scores, axis=-1)
        ctx = torch.einsum("bhqk,bhkd->bhqd", p, v)
        return torch.einsum("bhqd,hdm->bqm", ctx, w_o)

    x = A_x
    x = x + _A_ref(_layernorm(x, axis=-1), A_k_cache, A_v_cache, A_wq, A_wo)
    x = x + _B_ref(_layernorm(x, axis=-1), B_c_kv, B_w_q, B_w_uk, B_w_uv, B_w_o)
    x = x + _A_ref(_layernorm(x, axis=-1), A_k_cache, A_v_cache, A_wq, A_wo)
    x = x + _B_ref(_layernorm(x, axis=-1), B_c_kv, B_w_q, B_w_uk, B_w_uv, B_w_o)
    return x
```

```python
KNAME = "interleave_layers__mha_block_cached__compressed_kv_cla__decode_kernel"

class Asm:
    def __init__(self):
        self.lines = []
    def __call__(self, s):
        for l in s.strip("\n").split("\n"):
            if not l.strip(): continue
            self.lines.append(l if l.rstrip().endswith(":") else "    " + l.strip())
    def text(self):
        return "\n".join(self.lines) + "\n"

def wrap(body, grid=256, block=256, lds=0, vgpr=512, accum=256, sgpr=102, header=""):
    return f"""{header}; @launch grid=({grid},1,1) block=({block},1,1) lds={lds}
.amdgcn_target "amdgcn-amd-amdhsa--gfx950"
.text
.globl {KNAME}
.p2align 8
.type {KNAME},@function
{KNAME}:
{body}
.section .rodata,"a"
.p2align 6
.amdhsa_kernel {KNAME}
  .amdhsa_next_free_vgpr {vgpr}
  .amdhsa_next_free_sgpr {sgpr}
  .amdhsa_accum_offset {accum}
  .amdhsa_group_segment_fixed_size 0
  .amdhsa_kernarg_size 112
  .amdhsa_user_sgpr_count 2
  .amdhsa_user_sgpr_kernarg_segment_ptr 1
  .amdhsa_system_sgpr_workgroup_id_x 1
.end_amdhsa_kernel
"""
```

```python
import re
TRANS = ("v_exp_f32","v_log_f32","v_rcp_f32","v_rsq_f32","v_sqrt_f32","v_sin_f32","v_cos_f32","v_rcp_iflag_f32")
def regs(tok):
    tok = tok.strip()
    tok = tok.lstrip("-")
    m = re.fullmatch(r"abs\((.*)\)|\|(.*)\|", tok)
    if m: tok = m.group(1) or m.group(2)
    m = re.fullmatch(r"([vas])(\d+)", tok)
    if m: return {(m.group(1), int(m.group(2)))}
    m = re.fullmatch(r"([vas])\[(\d+):(\d+)\]", tok)
    if m: return {(m.group(1), i) for i in range(int(m.group(2)), int(m.group(3))+1)}
    if tok == "vcc": return {("s", "vcc")}
    if tok == "exec": return {("s", "exec")}
    if tok == "m0": return {("s", "m0")}
    return set()
class I:
    def __init__(self, line):
        self.line = line
        s = line.split(";")[0].strip()
        self.isinst = bool(s) and not s.endswith(":") and not s.startswith(".")
        self.defs = set(); self.uses = set(); self.kind = None; self.ws = 1
        self.A = self.B = self.C = set(); self.dpp = False; self.sdata = set(); self.lds = False
        if not self.isinst:
            self.ws = 0; return
        parts = s.split(None, 1); op = parts[0]; self.op = op
        rest = parts[1] if len(parts) > 1 else ""
        toks = [t.strip() for t in re.split(r",(?![^\[]*\])", rest)] if rest else []
        mods = ""
        if toks:
            last = toks[-1].split(None, 1)
            toks[-1] = last[0]; mods = last[1] if len(last) > 1 else ""
        self.mods = mods
        R = [regs(t) for t in toks]
        U = lambda l: set().union(*l) if l else set()
        if op == "s_nop": self.kind = "nop"; self.ws = int(toks[0], 0) + 1
        elif op.startswith("v_mfma") or op.startswith("v_smfmac"):
            self.kind = "mfma"; self.defs = R[0]; self.A = R[1]; self.B = R[2]
            if op.startswith("v_smfmac"):
                self.C = R[0]; self.A = R[1] | R[3]
            else: self.C = R[3]
            self.uses = self.A | self.B | self.C
            self.passes = 8 if "32x32" in op else 4
        elif op.startswith("v_"):
            self.kind = "valu"
            self.dpp = op.endswith("_dpp") or any(k in mods for k in ("quad_perm","row_","wave_"))
            if op.startswith("v_permlane"):
                self.defs = R[0] | R[1]; self.uses = R[0] | R[1]; self.kind = "perml"
            elif op.startswith("v_cmp"):
                self.defs = R[0]; self.uses = U(R[1:])
                if op.startswith("v_cmpx"): self.defs |= {("s","exec")}
            elif op.startswith(("v_add_co","v_sub_co","v_addc_co","v_subb_co")):
                self.defs = R[0] | R[1]; self.uses = U(R[2:])
            else:
                self.defs = R[0]; self.uses = U(R[1:])
                if op.startswith(("v_fmac","v_mac","v_dot2c","v_writelane")) or self.dpp: self.uses |= R[0]
            self.dppsrc = R[1] if self.dpp else set()
            self.trans = any(op.startswith(t) for t in TRANS)
            self.rl = op.startswith(("v_readlane","v_readfirstlane"))
            self.dot = op.startswith("v_dot")
        elif op.startswith("buffer_") or op.startswith("global_"):
            self.kind = "vmem"; self.lds = bool(re.search(r"\blds\b", mods))
            if "_load" in op and not self.lds:
                self.defs = R[0]; self.uses = U(R[1:])
            elif self.lds:
                self.uses = U(R) | {("s","m0")}
            else:
                self.uses = U(R)
                if op.startswith("buffer_"):
                    if "x4" in op or "x3" in op: self.sdata = R[0]
                    if "atomic" in op and "sc0" in mods: self.defs = R[0]
        elif op.startswith("ds_"):
            self.kind = "ds"
            if op.startswith("ds_read") or "rtn" in op or "permute" in op or "swizzle" in op:
                self.defs = R[0]; self.uses = U(R[1:])
            else: self.uses = U(R)
        else:
            self.kind = "salu"
            if op.startswith(("s_cmp","s_cbranch","s_branch","s_waitcnt","s_barrier","s_sleep","s_endpgm","s_setprio","s_bitcmp")):
                self.uses = U(R)
            else:
                self.defs = R[0] if R else set(); self.uses = U(R[1:])
                if "saveexec" in op: self.defs |= {("s","exec")}
def vec(s): return {r for r in s if r[0] in "va"}
def sca(s): return {r for r in s if r[0] == "s"}
def need(p, c):
    n = 0
    isvalu = lambda x: x.kind in ("valu", "perml")
    if isvalu(p):
        d = vec(p.defs); sd = sca(p.defs)
        if c.kind == "mfma" and d & c.uses: n = max(n, 2)
        if c.kind == "mfma" and ("s","exec") in sd: n = max(n, 4)
        if c.kind == "valu" and c.dpp and d & c.uses: n = max(n, 2)
        if c.kind == "perml" and d & c.uses: n = max(n, 2)
        if c.kind == "valu" and c.rl and d & c.uses: n = max(n, 1)
        if p.kind == "valu" and p.trans and (isvalu(c) or c.kind=="mfma") and d & c.uses: n = max(n, 1)
        if p.kind == "valu" and p.dot and c.kind != "nop" and d & (c.uses | c.defs): n = max(n, 3)
        if sd:
            if c.kind == "vmem" and sd & c.uses: n = max(n, 5)
            if isvalu(c) and sd & c.uses: n = max(n, 4 if getattr(c, "rl", False) or c.op.startswith("v_writelane") else 2)
            if c.kind == "valu" and c.op.startswith("v_cndmask") and ("s","vcc") in sd: n = max(n, 2)
            if ("s","exec") in sd and (c.kind == "perml" or (c.kind == "valu" and (c.dpp or c.rl))): n = max(n, 5)
            if c.kind == "salu" and sd & c.uses: n = max(n, 1)
    if p.kind == "mfma":
        big = {4: 8, 8: 12}[p.passes]; ov = {4: 6, 8: 10}[p.passes]; war = {4: 3, 8: 7}[p.passes]
        if c.kind == "mfma":
            if p.defs & (c.A | c.B): n = max(n, big)
            if p.defs & c.C and not (p.defs == c.C and p.passes == c.passes): n = max(n, ov)
            if p.defs & c.defs and not (p.defs == c.C): n = max(n, ov)
        elif c.kind in ("valu", "perml", "vmem", "ds"):
            if p.defs & (c.uses | c.defs): n = max(n, big)
            if isvalu(c) and p.C & c.defs: n = max(n, war)
    if p.kind == "vmem" and p.sdata:
        if isvalu(c) and p.sdata & c.defs: n = max(n, 2)
        elif c.kind in ("mfma","ds","vmem") and p.sdata & c.defs: n = max(n, 1)
    if p.kind == "salu" and ("s","m0") in p.defs and c.kind == "vmem" and c.lds: n = max(n, 1)
    return n
def fix(text, verbose=False):
    out = []; hists = [[]]
    snaps = {}
    added = 0
    for line in text.split("\n"):
        c = I(line)
        st = line.split(";")[0].strip()
        if st.endswith(":"):
            for sn in snaps.pop(st[:-1], []): hists.append(sn)
        if c.isinst:
            req = 0
            for hist in hists:
                dist = 0
                for p in reversed(hist):
                    k = need(p, c) - dist
                    if k > req: req = k
                    dist += p.ws
                    if dist >= 20: break
            if req > 0:
                nop = I(f"    s_nop {req-1}")
                out.append(nop.line); added += req
                for hist in hists: hist.append(nop)
            for hist in hists: hist.append(c)
            hists = [h[-24:] for h in hists]
            uniq = []
            for h in hists:
                if not any([id(x) for x in h] == [id(x) for x in u] for u in uniq): uniq.append(h)
            hists = uniq
            if c.op.startswith(("s_cbranch", "s_branch")):
                tgt = st.split()[1]
                snaps.setdefault(tgt, []).extend([list(h) for h in hists])
                if c.op == "s_branch": hists = [[]]
            if c.op == "s_endpgm": hists = [[]]
        out.append(line)
    if verbose: print("hazard nops added (wait states):", added)
    return "\n".join(out)
```

```python
import sys, math
from asmlib import *
from hazard import fix

QP_H = 6272; QP_L = 32 * QP_H
OP_H = 2176; OP_L = 32 * OP_H
Y_L = 18432
QP0 = 0
OP0 = QP0 + 4 * QP_L
Y0 = OP0 + 4 * OP_L
QA0 = Y0 + 4 * Y_L;  QA_L = 32768
PB0 = QA0 + 2 * QA_L; PB_L = 262144
MLB0 = PB0 + 2 * PB_L; MLB_L = 32768
MLA0 = MLB0 + 2 * MLB_L; MLA_L = 32768
CLR_END = MLA0 + 2 * MLA_L
assert CLR_END <= 0x200000
PA0 = 0x200000; PA_L = 0x400000
STAMP0 = 0x1000000
OOB = 0x40000000
LV = 0; LV_W = 20480
LC = 81920; LC_W = 16384
LS = 147456
C_WQ = 0; C_WO = 6144
NRES = 11
VRES = 256 - 16 * NRES
SCALE = 128 ** -0.5 * math.log2(math.e)

def f2u(x):
    import struct
    return "0x%08x" % struct.unpack("<I", struct.pack("<f", x))[0]

K_, V_, WQA, WO, CKV, WQB, WUK, WUV, WOB, WS, X0, OUT, DBG, CODE = [f"s[{4+4*i}:{7+4*i}]" for i in range(14)]
sW, sX, sR, sH, sJ, sKV, sLV, sLC, sOffQ, sOffO = "s3", "s60", "s61", "s62", "s63", "s64", "s65", "s66", "s67", "s68"
sXCC = "s69"
sT0, sT1, sT2, sT3, sT4 = "s70", "s71", "s72", "s73", "s74"
sCNT = "s80"
sC = "s81"
sM = "s75"
POLL_MAX = 0x20000

def vr(a, n=1):
    return f"v{a}" if n == 1 else f"v[{a}:{a+n-1}]"
def ar(a, n=1):
    return f"a{a}" if n == 1 else f"a[{a}:{a+n-1}]"

def merge(main, side, every=1, per=2, start=0):
    out = []; side = list(side); k = 0
    for i, m in enumerate(main):
        out.append(m)
        if i >= start and (i - start) % every == every - 1:
            for _ in range(per):
                if k < len(side): out.append(side[k]); k += 1
    out += side[k:]
    return out

def L(s):
    return [x.strip() for x in s.strip("\n").split("\n") if x.strip()]

class Gen:
    def __init__(self, stamps=False, cfg=None):
        self.a = Asm(); self.stamps = stamps; self.nst = 0; self.snames = []
        self.cfg = dict(wnt="nt", d_h1=0, d_y=0, d_q=0, d_qa=0, d_pa=0, d_pb=0, force_slow=0)
        self.cfg.update(cfg or {})
        self.uid = 0; self.stubs = []
    def e(self, s):
        if isinstance(s, list): s = "\n".join(s)
        if s.strip(): self.a(s)
    def lab(self, n):
        self.uid += 1
        return f"L_{n}_{self.uid}"
    def stamp(self, name):
        if not self.stamps: return
        k = self.nst; self.nst += 1
        if self.mode != "slow": self.snames.append(name)
        if k > 0:
            self.e(f"s_waitcnt lgkmcnt(0)\nv_writelane_b32 v1, s{82+2*((k-1)&1)}, {k-1}")
        self.e(f"s_memrealtime s[{82+2*(k&1)}:{83+2*(k&1)}]")
    def exit(self):
        if self.stamps:
            k = self.nst
            self.e(f"""s_waitcnt lgkmcnt(0)
v_writelane_b32 v1, s{82+2*((k-1)&1)}, {k-1}
s_branch L_dump""")
        else:
            self.e("s_endpgm")
    def delay(self, key):
        d = self.cfg.get(key, 0)
        if d: self.e(f"s_sleep {d}")
    def retry(self, top):
        st = self.lab("retry")
        self.e(f"s_cbranch_vccnz {st}")
        self.stubs.append(f"""{st}:
s_add_u32 {sCNT}, {sCNT}, 1
s_cmp_lt_u32 {sCNT}, {POLL_MAX}
s_nop 7
s_cbranch_scc1 {top}
s_endpgm""")
    def flush_stubs(self):
        for s in self.stubs: self.e(s)
        self.stubs = []

    def dma_voff(self, v, rs, offreg):
        t = v + 1
        self.e(f"""v_bfe_u32 v{v}, v0, 3, 2
v_bfe_u32 v{t}, v0, 1, 2
v_lshl_add_u32 v{v}, v{v}, 3, v{t}
v_mul_u32_u24 v{v}, {rs}, v{v}
v_lshrrev_b32 v{t}, 5, v0
v_lshl_add_u32 v{v}, v{t}, 5, v{v}
v_and_b32 v{t}, 1, v0
v_lshl_add_u32 v{v}, v{t}, 4, v{v}""")
        if offreg: self.e(f"v_add_u32 v{v}, {offreg}, v{v}")
    def dma_w(self, v, srd, sbase, rs, nsteps, coff):
        o = []
        for s in range(nsteps):
            for hh in range(2):
                o.append(f"s_add_u32 m0, {sLC}, {coff + (s*2+hh)*1024}")
                o.append(f"s_add_u32 {sT4}, {sbase}, {(32*s+4*hh)*rs}")
                o.append(f"buffer_load_dwordx4 v{v}, {srd}, {sT4} offen {self.cfg['wnt']} lds")
        self.e(o)
    def dma_wq(self, srd, v):
        self.dma_voff(v, 8192, sOffQ)
        self.e(f"""s_mul_i32 {sT0}, {sJ}, {96*8192}
s_lshl_b32 {sT1}, {sH}, 8
s_add_u32 {sT0}, {sT0}, {sT1}
s_lshl_b32 {sT1}, {sW}, 6
s_add_u32 {sT0}, {sT0}, {sT1}""")
        self.dma_w(v, srd, sT0, 8192, 3, C_WQ)
    def dma_wo(self, srd, v):
        self.dma_voff(v, 1152, sOffO)
        self.e(f"""s_lshl_b32 {sT0}, {sX}, 2
s_add_u32 {sT0}, {sT0}, {sW}
s_mul_i32 {sT0}, {sT0}, {128*1152}
s_lshl_b32 {sT1}, {sR}, 6
s_add_u32 {sT0}, {sT0}, {sT1}""")
        self.dma_w(v, srd, sT0, 1152, 4, C_WO)
    def dma_wuv(self, v):
        self.dma_voff(v, 8192, None)
        self.e(f"""s_lshl_b32 {sT0}, {sJ}, 19
s_lshl_b32 {sT1}, {sH}, 8
s_add_u32 {sT0}, {sT0}, {sT1}
s_lshl_b32 {sT1}, {sW}, 6
s_add_u32 {sT0}, {sT0}, {sT1}""")
        self.dma_w(v, WUV, sT0, 8192, 2, C_WQ)
    def tr_w(self, dst, nsteps, coff):
        o = []
        for s in range(nsteps):
            for t in range(2):
                for hh in range(2):
                    o.append(f"ds_read_b64_tr_b16 {vr(dst+(s*2+t)*4+hh*2, 2)}, v2 offset:{coff+(s*2+hh)*1024+t*512}")
        self.e(o)
    def dma_ckv(self, v, lbase):
        t = v + 1
        self.e(f"""v_bfe_u32 v{v}, v0, 1, 3
v_lshlrev_b32 v{v}, 10, v{v}
v_lshrrev_b32 v{t}, 4, v0
v_lshl_add_u32 v{v}, v{t}, 5, v{v}
v_and_b32 v{t}, 1, v0
v_lshl_add_u32 v{v}, v{t}, 4, v{v}
s_lshl_b32 {sT0}, {sX}, 20
s_lshr_b32 {sT1}, {sR}, 1
s_lshl_b32 {sT1}, {sT1}, 16
s_add_u32 {sT0}, {sT0}, {sT1}
s_lshl_b32 {sT1}, {sW}, 8
s_add_u32 {sT0}, {sT0}, {sT1}""")
        for kb in range(8):
            for dh in range(2):
                self.e(f"""s_add_u32 m0, {lbase}, {(kb*2+dh)*1024}
s_add_u32 {sT4}, {sT0}, {kb*8192+dh*128}
buffer_load_dwordx4 v{v}, {CKV}, {sT4} offen {self.cfg['wnt']} lds""")
    def load_wuk(self, dst, v):
        self.e(f"""v_and_b32 v{v}, 15, v0
v_lshlrev_b32 v{v}, 13, v{v}
v_lshrrev_b32 v{v+1}, 4, v0
v_lshl_add_u32 v{v}, v{v+1}, 4, v{v}
s_lshl_b32 {sT0}, {sJ}, 2
s_add_u32 {sT0}, {sT0}, {sW}
s_lshl_b32 {sT0}, {sT0}, 17
s_lshl_b32 {sT1}, {sH}, 8
s_add_u32 {sT0}, {sT0}, {sT1}""")
        for s in range(4):
            self.e(f"buffer_load_dwordx4 {vr(dst+4*s,4)}, v{v}, {WUK}, {sT0} offen offset:{s*64} {self.cfg['wnt']}")

    def qproj_core(self, xr, wq, d, out):
        o = [f"v_mfma_f32_16x16x32_bf16 {vr(d+24,4)}, {vr(xr,4)}, {vr(xr,4)}, 0"]
        for s in range(3):
            for t in range(2):
                o.append(f"v_mfma_f32_16x16x32_bf16 {vr(d+(s*2+t)*4,4)}, {vr(xr,4)}, {vr(wq+(s*2+t)*4,4)}, 0")
        g = d + 24
        D = lambda s, t, i: d + (s*2+t)*4 + i
        o += [f"v_add_f32_dpp v{out+4}, v{g+1}, v{g} quad_perm:[1,1,1,1] row_mask:0xf bank_mask:0xf",
              f"v_add_f32_dpp v{out+5}, v{g+3}, v{g+3} quad_perm:[1,1,1,1] row_mask:0xf bank_mask:0xf"]
        for t in range(2):
            o += [f"v_add_f32 v{out+t}, v{D(0,t,0)}, v{D(1,t,1)}", f"v_add_f32 v{out+2+t}, v{D(0,t,3)}, v{D(1,t,3)}"]
        o += [f"v_add_f32_dpp v{out+4}, v{g+2}, v{out+4} quad_perm:[2,2,2,2] row_mask:0xf bank_mask:0xf",
              f"v_add_f32_dpp v{out+5}, v{g+3}, v{out+5} quad_perm:[2,2,2,2] row_mask:0xf bank_mask:0xf"]
        for t in range(2):
            o += [f"v_add_f32 v{out+t}, v{out+t}, v{D(2,t,2)}", f"v_add_f32 v{out+2+t}, v{out+2+t}, v{D(2,t,3)}"]
        self.e(o)
    def qp_addr(self, va, vb, Lr):
        self.e(f"""v_lshlrev_b32 v{va}, 4, v0
v_mov_b32 v{vb}, {OOB}
v_cmp_gt_u32 vcc, 16, v0
v_cndmask_b32 v{va}, v{vb}, v{va}, vcc
s_lshl_b32 {sT0}, {sJ}, 10
s_lshl_b32 {sT1}, {sW}, 8
s_add_u32 {sT0}, {sT0}, {sT1}
s_add_u32 {sT0}, {sT0}, {sOffQ}
v_add_u32 v{va}, {sT0}, v{va}
s_lshl_b32 {sT0}, {sJ}, 3
s_add_u32 {sT0}, {sT0}, 6144
s_add_u32 {sT0}, {sT0}, {sOffQ}
s_cmp_eq_u32 {sW}, 0
s_cselect_b32 {sT0}, {sT0}, {OOB}
v_writelane_b32 v{vb}, {sT0}, 0
s_mul_i32 {sT3}, {sH}, {QP_H}
s_add_u32 {sT3}, {sT3}, {QP0 + Lr*QP_L}""")
    def qp_store(self, out, va, vb):
        self.e(f"""buffer_store_dwordx4 {vr(out,4)}, v{va}, {WS}, {sT3} offen {self.ist}
buffer_store_dwordx2 {vr(out+4,2)}, v{vb}, {WS}, {sT3} offen {self.ist}""")

    def y_prep(self, Lr):
        self.e(f"""v_and_b32 v76, 3, v0
v_cmp_eq_u32 vcc, 3, v76
v_cndmask_b32 v76, v76, 0, vcc
v_lshlrev_b32 v76, 7, v76
v_lshrrev_b32 v77, 4, v0
v_lshl_add_u32 v76, v77, 5, v76
v_bfe_u32 v77, v0, 2, 2
v_mul_u32_u24 v77, {2*2304}, v77
v_add_u32 v76, v77, v76
v_add_u32 v76, {sOffQ}, v76
s_mul_i32 s76, {sJ}, 384
s_add_u32 s76, s76, {Y0 + Lr*Y_L}
v_mov_b32 v8, 0x3f803f80
v_mov_b32 v9, 0x3f803f80
v_mov_b32 v10, 0x3f803f80
v_mov_b32 v11, 0x3f803f80
s_mov_b32 {sCNT}, 0""")
    def y_poll(self):
        top = self.lab("ypoll")
        self.e(f"""{top}:
buffer_load_dwordx4 v[20:23], v76, {WS}, s76 offen sc1
buffer_load_dwordx4 v[24:27], v76, {WS}, s76 offen offset:16 sc1
buffer_load_dwordx4 v[28:31], v76, {WS}, s76 offen offset:2304 sc1
buffer_load_dwordx4 v[32:35], v76, {WS}, s76 offen offset:2320 sc1""")
        for i in range(4):
            self.e(f"v_lshlrev_b32 v{12+2*i}, 16, v{4+i}\nv_and_b32 v{13+2*i}, 0xffff0000, v{4+i}")
        self.e("s_waitcnt vmcnt(0)")
        self.stamp("y_got")
        for i in range(4):
            self.e(f"v_pk_add_f32 {vr(20+2*i,2)}, {vr(20+2*i,2)}, {vr(28+2*i,2)}")
        for sh in (4, 8):
            for i in range(8):
                self.e(f"v_add_f32_dpp v{20+i}, v{20+i}, v{20+i} row_ror:{sh} row_mask:0xf bank_mask:0xf")
        for i in range(4):
            self.e(f"v_pk_add_f32 {vr(20+2*i,2)}, {vr(20+2*i,2)}, {vr(12+2*i,2)}")
        self.e("s_mov_b32 exec_lo, 0x77777777\ns_mov_b32 exec_hi, 0x77777777")
        for i in range(4):
            self.e(f"v_cvt_pk_bf16_f32 v{8+i}, v{20+2*i}, v{21+2*i}")
        self.e("s_mov_b64 exec, -1")
        return top
    def qproj_phase(self, Lr, after=None):
        self.y_prep(Lr - 1)
        self.qp_addr(74, 75, Lr)
        self.e("s_waitcnt lgkmcnt(0)")
        self.delay("d_y")
        top = self.y_poll()
        self.qproj_core(8, 40, 12, 64)
        self.e("v_cmp_u_f32 vcc, v64, v65")
        self.retry(top)
        self.qp_store(64, 74, 75)
        self.stamp("qp_pub")
        self.e("v_mov_b32 v4, v8\nv_mov_b32 v5, v9\nv_mov_b32 v6, v10\nv_mov_b32 v7, v11")

    def q_prep(self, Lr):
        self.e(f"""v_lshlrev_b32 v76, 4, v0
v_mov_b32 v77, 0
s_mul_i32 s76, {sH}, {QP_H}
s_add_u32 s76, s76, {QP0 + Lr*QP_L}
s_add_u32 s77, s76, 4096
s_lshl_b32 {sT0}, {sW}, 12
s_add_u32 {sT0}, {sT0}, {LS}
v_lshrrev_b32 v78, 4, v0
v_and_b32 v79, 15, v0
v_lshlrev_b32 v79, 1, v79
v_lshl_add_u32 v78, v78, 6, v79
v_add_u32 v78, {sT0}, v78
s_mov_b32 {sCNT}, 0""")
    def q_loads(self, b):
        for u in range(6):
            so, im = ("s76", u*1024) if u < 4 else ("s77", (u-4)*1024)
            self.e(f"buffer_load_dwordx4 {vr(b+4*u,4)}, v76, {WS}, {so} offen offset:{im} sc1")
        for i in range(3):
            self.e(f"buffer_load_dwordx4 {vr(b+24+4*i,4)}, v77, {WS}, s77 offen offset:{2048+16*i} sc1")
    def q_reduce(self, b, top):
        st = b + 24
        o = []
        o += [f"v_pk_add_f32 {vr(st,2)}, {vr(st,2)}, {vr(st+2,2)}", f"v_pk_add_f32 {vr(st+4,2)}, {vr(st+4,2)}, {vr(st+6,2)}",
              f"v_pk_add_f32 {vr(st+8,2)}, {vr(st+8,2)}, {vr(st+10,2)}"]
        for u in (0, 2, 4):
            for k in (0, 2):
                o.append(f"v_pk_add_f32 {vr(b+4*u+k,2)}, {vr(b+4*u+k,2)}, {vr(b+4*u+4+k,2)}")
        o += [f"v_pk_add_f32 {vr(st,2)}, {vr(st,2)}, {vr(st+4,2)}"]
        for k in (0, 2):
            o.append(f"v_pk_add_f32 {vr(b+k,2)}, {vr(b+k,2)}, {vr(b+8+k,2)}")
        o += [f"v_pk_add_f32 {vr(st,2)}, {vr(st,2)}, {vr(st+8,2)}"]
        for k in (0, 2):
            o.append(f"v_pk_add_f32 {vr(b+k,2)}, {vr(b+k,2)}, {vr(b+16+k,2)}")
        o += [f"v_mul_f32 v{st+1}, {f2u(1/576)}, v{st+1}",
              f"v_fma_f32 v{b}, -v{st+1}, v{b+2}, v{b}",
              f"v_fma_f32 v{b+1}, -v{st+1}, v{b+3}, v{b+1}",
              f"v_add_f32 v{b+2}, v{b+1}, v{st}",
              f"v_cmp_u_f32 vcc, v{b}, v{b+2}",
              f"v_cvt_pk_bf16_f32 v{b+3}, v{b}, v{b+1}"]
        self.e(o)
        self.retry(top)
        self.e(f"""ds_write_b16 v78, v{b+3}
ds_write_b16_d16_hi v78, v{b+3} offset:32
v_mul_f32 v{st}, {f2u(1/576)}, v{st}
v_fma_f32 v{st}, -v{st+1}, v{st+1}, v{st}
v_max_f32 v{st}, 0, v{st}
v_add_f32 v{st}, {f2u(1e-5)}, v{st}
v_rsq_f32 v{st}, v{st}
v_mul_f32 v{st}, {f2u(SCALE)}, v{st}
v_readfirstlane_b32 {sC}, v{st}""")

    def qk(self, side=None):
        self.e(f"""v_and_b32 v79, 1, v0
v_lshlrev_b32 v79, 6, v79
v_lshrrev_b32 v77, 4, v0
v_lshl_add_u32 v79, v77, 4, v79
s_lshl_b32 {sT0}, {sW}, 12
s_add_u32 {sT0}, {sT0}, {LS}
v_add_u32 v79, {sT0}, v79
s_waitcnt lgkmcnt(0)
ds_read_b128 v[8:11], v79
ds_read_b128 v[12:15], v79 offset:128
s_waitcnt lgkmcnt(0)""")
        main = []
        def ext(t):
            b, rho = t >> 2, t & 3
            acc = 16 + (t & 3) * 4
            if b & 1 == 0:
                return f"v_add_f32_dpp v{32+rho}, v{acc+1}, v{acc} row_ror:8 row_mask:{1<<(b>>1):#x} bank_mask:0x3"
            return f"v_add_f32_dpp v{32+rho}, v{acc}, v{acc+1} row_ror:8 row_mask:{1<<(b>>1):#x} bank_mask:0xc"
        side = list(side or [])
        for t in range(32):
            acc = 16 + (t & 3) * 4
            main.append(f"v_mfma_f32_16x16x32_bf16 {vr(acc,4)}, v[8:11], {ar(t*8,4)}, 0")
            if t >= 3: main.append(ext(t - 3))
            main.append(f"v_mfma_f32_16x16x32_bf16 {vr(acc,4)}, v[12:15], {ar(t*8+4,4)}, {vr(acc,4)}")
            if t >= 2:
                for _ in range(2):
                    if side: main.append(side.pop(0))
        main += [ext(29), ext(30), ext(31)] + side
        self.e(main)
    def softmax(self):
        self.e(f"""v_max3_f32 v36, v32, v33, v34
v_max_f32 v36, v36, v35
s_lshl_b32 {sT0}, {sW}, 12
s_add_u32 {sT0}, {sT0}, {LS}
v_max_f32_dpp v36, v36, v36 quad_perm:[1,0,3,2] row_mask:0xf bank_mask:0xf
v_lshl_add_u32 v79, v0, 3, {sT0}
v_lshrrev_b32 v78, 4, v0
v_max_f32_dpp v36, v36, v36 quad_perm:[2,3,0,1] row_mask:0xf bank_mask:0xf
v_lshl_add_u32 v78, v78, 4, {sT0}
v_max_f32_dpp v36, v36, v36 row_half_mirror row_mask:0xf bank_mask:0xf
v_max_f32_dpp v36, v36, v36 row_mirror row_mask:0xf bank_mask:0xf
v_max_f32_dpp v36, v36, v36 row_bcast:15 row_mask:0xa bank_mask:0xf
v_max_f32_dpp v36, v36, v36 row_bcast:31 row_mask:0xc bank_mask:0xf
v_mul_f32 v36, {sC}, v36
v_readlane_b32 {sM}, v36, 63
v_mul_f32 v32, {sC}, v32
v_mul_f32 v33, {sC}, v33
v_mul_f32 v34, {sC}, v34
v_mul_f32 v35, {sC}, v35
v_subrev_f32 v32, {sM}, v32
v_subrev_f32 v33, {sM}, v33
v_subrev_f32 v34, {sM}, v34
v_subrev_f32 v35, {sM}, v35
v_exp_f32 v32, v32
v_exp_f32 v33, v33
v_exp_f32 v34, v34
v_exp_f32 v35, v35
v_cvt_pk_bf16_f32 v36, v32, v33
v_cvt_pk_bf16_f32 v37, v34, v35
ds_write_b64 v79, v[36:37] offset:512""")
    def lsum(self):
        return L(f"""v_add_f32 v32, v32, v33
v_add_f32 v34, v34, v35
v_add_f32 v33, v32, v34
v_mov_b32 v32, {sM}
s_lshl_b32 {sT0}, {sW}, 3
v_add_f32_dpp v33, v33, v33 quad_perm:[1,0,3,2] row_mask:0xf bank_mask:0xf
s_add_u32 {sT0}, {sT0}, {LS+3840}
v_mov_b32 v34, {sT0}
v_add_f32_dpp v33, v33, v33 quad_perm:[2,3,0,1] row_mask:0xf bank_mask:0xf
v_add_f32_dpp v33, v33, v33 row_half_mirror row_mask:0xf bank_mask:0xf
v_add_f32_dpp v33, v33, v33 row_mirror row_mask:0xf bank_mask:0xf
v_add_f32_dpp v33, v33, v33 row_bcast:15 row_mask:0xa bank_mask:0xf
v_add_f32_dpp v33, v33, v33 row_bcast:31 row_mask:0xc bank_mask:0xf
v_readlane_b32 {sT1}, v33, 63
v_mov_b32 v33, {sT1}
ds_write_b64 v34, v[32:33]""")
    def mlcomb(self, Lr):
        return L(f"""v_mov_b32 v34, {LS+3840}
ds_read_b128 v[8:11], v34
ds_read_b128 v[12:15], v34 offset:16
v_lshlrev_b32 v38, 2, v0
s_lshl_b32 {sT0}, {sJ}, 8
s_cmp_eq_u32 {sW}, 0
s_cselect_b32 {sT0}, {sT0}, {OOB}
v_add_u32 v38, {sT0}, v38
s_lshl_b32 {sT0}, {sJ}, 3
s_add_u32 {sT0}, {sT0}, 2048
s_cmp_eq_u32 {sW}, 0
s_cselect_b32 {sT0}, {sT0}, {OOB}
v_mov_b32 v39, {OOB}
v_writelane_b32 v39, {sT0}, 0
s_mul_i32 {sT3}, {sH}, {OP_H}
s_add_u32 {sT3}, {sT3}, {OP0 + Lr*OP_L}
s_waitcnt lgkmcnt(0)
v_max3_f32 v36, v8, v10, v12
v_max_f32 v36, v36, v14
v_sub_f32 v8, v8, v36
v_sub_f32 v10, v10, v36
v_sub_f32 v12, v12, v36
v_sub_f32 v14, v14, v36
v_exp_f32 v8, v8
v_exp_f32 v10, v10
v_exp_f32 v12, v12
v_exp_f32 v14, v14
v_mul_f32 v37, v8, v9
v_fmac_f32 v37, v10, v11
v_fmac_f32 v37, v12, v13
v_fmac_f32 v37, v14, v15
v_and_b32 v34, 15, v0
v_lshrrev_b32 v35, 4, v0
v_mul_u32_u24 v35, 576, v35
v_lshl_add_u32 v34, v34, 2, v35
s_lshl_b32 {sT0}, {sW}, 12
s_add_u32 {sT0}, {sT0}, {LS+1024}
v_add_u32 v34, {sT0}, v34
v_lshlrev_b32 v35, 3, v0
v_add_u32 v35, {LS+1024}, v35""")
    def o_finish(self, vmwait=None):
        for T in range(0, 8, 2):
            self.e(f"ds_write2_b32 v34, v{40+4*T}, v{44+4*T} offset0:{T*16} offset1:{T*16+16}")
        self.e("s_waitcnt lgkmcnt(0)" + (f" vmcnt({vmwait})" if vmwait is not None else ""))
        self.e(f"""s_barrier
ds_read_b64 v[16:17], v35
ds_read_b64 v[18:19], v35 offset:4096
ds_read_b64 v[20:21], v35 offset:8192
ds_read_b64 v[22:23], v35 offset:12288
s_waitcnt lgkmcnt(3)
v_pk_mul_f32 v[16:17], v[16:17], v[8:9] op_sel_hi:[1,0]
s_waitcnt lgkmcnt(2)
v_pk_fma_f32 v[16:17], v[18:19], v[10:11], v[16:17] op_sel_hi:[1,0,1]
s_waitcnt lgkmcnt(1)
v_pk_fma_f32 v[16:17], v[20:21], v[12:13], v[16:17] op_sel_hi:[1,0,1]
s_waitcnt lgkmcnt(0)
v_pk_fma_f32 v[16:17], v[22:23], v[14:15], v[16:17] op_sel_hi:[1,0,1]
v_cvt_pk_bf16_f32 v16, v16, v17
buffer_store_dword v16, v38, {WS}, {sT3} offen {self.ist}
buffer_store_dwordx2 v[36:37], v39, {WS}, {sT3} offen {self.ist}""")
        self.stamp("op_pub")

    def mlweights(self, m, wdst):
        t = m + 2
        o = [f"v_max_f32_dpp v{t}, v{m}, v{m} row_ror:1 row_mask:0xf bank_mask:0xf",
             f"v_max_f32_dpp v{t}, v{t}, v{t} row_ror:2 row_mask:0xf bank_mask:0xf",
             f"v_max_f32_dpp v{t}, v{t}, v{t} row_ror:4 row_mask:0xf bank_mask:0xf",
             f"v_sub_f32 v{t}, v{m}, v{t}",
             f"v_exp_f32 v{t}, v{t}",
             f"v_mul_f32 v{t+1}, v{t}, v{m+1}",
             f"v_add_f32_dpp v{t+1}, v{t+1}, v{t+1} row_ror:1 row_mask:0xf bank_mask:0xf",
             f"v_add_f32_dpp v{t+1}, v{t+1}, v{t+1} row_ror:2 row_mask:0xf bank_mask:0xf",
             f"v_add_f32_dpp v{t+1}, v{t+1}, v{t+1} row_ror:4 row_mask:0xf bank_mask:0xf",
             f"v_rcp_f32 v{t+1}, v{t+1}",
             f"v_mul_f32 v{t}, v{t}, v{t+1}"]
        for i in range(4):
            o.append(f"v_mov_b32_dpp v{wdst+i}, v{t} row_newbcast:{i} row_mask:0xf bank_mask:0xf")
        return o
    def rowsum(self, acc, w, t):
        o = []
        if w is not None:
            for k in range(2):
                o.append(f"v_pk_mul_f32 {vr(acc+4*k,2)}, {vr(acc+4*k,2)}, {vr(w,2)}")
            for k in range(2):
                o.append(f"v_pk_fma_f32 {vr(acc+4*k,2)}, {vr(acc+4*k+2,2)}, {vr(w+2,2)}, {vr(acc+4*k,2)}")
        else:
            for k in range(2):
                o.append(f"v_pk_add_f32 {vr(acc+4*k,2)}, {vr(acc+4*k,2)}, {vr(acc+4*k+2,2)}")
        o += [f"v_add_f32 v{t}, v{acc}, v{acc+1}", f"v_add_f32 v{t+1}, v{acc+4}, v{acc+5}",
              f"v_permlane16_swap_b32 v{t}, v{t+1}", f"v_add_f32 v{t}, v{t}, v{t+1}"]
        return o

    def oproj(self, Lr, weighted):
        self.e(f"""v_and_b32 v76, 7, v0
v_lshlrev_b32 v76, 8, v76
v_lshrrev_b32 v77, 4, v0
v_lshl_add_u32 v76, v77, 4, v76
v_and_b32 v77, 1, v77
v_lshl_add_u32 v77, v77, 2, v0
v_and_b32 v77, 7, v77
v_lshlrev_b32 v77, 3, v77
s_lshl_b32 s76, {sX}, 2
s_add_u32 s76, s76, {sW}
s_mul_i32 s76, s76, {OP_H}
s_add_u32 s76, s76, {OP0 + Lr*OP_L}
s_lshl_b32 {sT0}, {sW}, 12
s_add_u32 {sT0}, {sT0}, {LS+3584}
v_lshl_add_u32 v78, v0, 2, {sT0}
v_and_b32 v79, 7, v0
v_lshlrev_b32 v79, 4, v79
v_add_u32 v79, {LS+3584}, v79
v_lshlrev_b32 v75, 4, v0
v_mov_b32 v74, {OOB}
v_cmp_gt_u32 vcc, 8, v0
v_cndmask_b32 v75, v74, v75, vcc
s_cmp_eq_u32 {sW}, 0
s_cselect_b32 {sT0}, {sOffO}, {OOB}
v_add_u32 v75, {sT0}, v75
s_mul_i32 {sT3}, {sX}, 2304
s_lshl_b32 {sT0}, {sR}, 7
s_add_u32 {sT3}, {sT3}, {sT0}
s_add_u32 {sT3}, {sT3}, {Y0 + Lr*Y_L}
s_mov_b32 {sCNT}, 0
s_waitcnt lgkmcnt(0)""")
        self.delay("d_h1")
        top = self.lab("opoll")
        self.e(f"{top}:")
        if weighted: self.e(f"buffer_load_dwordx2 v[32:33], v77, {WS}, s76 offen offset:2048 sc1")
        for s in range(4):
            self.e(f"buffer_load_dwordx4 {vr(8+4*s,4)}, v76, {WS}, s76 offen offset:{s*64} sc1")
        self.e("s_waitcnt vmcnt(0)")
        self.stamp("op_got")
        mf = []
        for s in range(4):
            for t in range(2):
                mf.append(f"v_mfma_f32_16x16x32_bf16 {vr(24+4*t,4)}, {vr(8+4*s,4)}, {vr(40+(s*2+t)*4,4)}, {vr(24+4*t,4) if s else 0}")
        self.e(merge(mf, self.mlweights(32, 36) if weighted else [], per=2))
        self.e(self.rowsum(24, 36 if weighted else None, 32))
        self.e("v_cmp_u_f32 vcc, v32, v32")
        self.retry(top)
        self.e(f"""ds_write_b32 v78, v32
s_waitcnt lgkmcnt(0)
s_barrier
ds_read_b128 v[8:11], v79
ds_read_b128 v[12:15], v79 offset:4096
ds_read_b128 v[16:19], v79 offset:8192
ds_read_b128 v[20:23], v79 offset:12288
s_waitcnt lgkmcnt(2)
v_pk_add_f32 v[8:9], v[8:9], v[12:13]
v_pk_add_f32 v[10:11], v[10:11], v[14:15]
s_waitcnt lgkmcnt(0)
v_pk_add_f32 v[16:17], v[16:17], v[20:21]
v_pk_add_f32 v[18:19], v[18:19], v[22:23]
v_pk_add_f32 v[8:9], v[8:9], v[16:17]
v_pk_add_f32 v[10:11], v[10:11], v[18:19]
buffer_store_dwordx4 v[8:11], v75, {WS}, {sT3} offen sc1""")
        self.stamp("y_pub")

    def pa_addr(self, v, i, sreg):
        self.e(f"""v_and_b32 v{v}, 15, v0
v_lshlrev_b32 v{v}, 14, v{v}
v_lshrrev_b32 v{v+1}, 4, v0
v_lshl_add_u32 v{v}, v{v+1}, 4, v{v}
s_lshl_b32 {sreg}, {sX}, 19
s_and_b32 {sT0}, {sR}, 1
s_lshl_b32 {sT0}, {sT0}, 18
s_add_u32 {sreg}, {sreg}, {sT0}
s_lshr_b32 {sT0}, {sR}, 1
s_lshl_b32 {sT0}, {sT0}, 10
s_add_u32 {sreg}, {sreg}, {sT0}
s_lshl_b32 {sT0}, {sW}, 8
s_add_u32 {sreg}, {sreg}, {sT0}
s_add_u32 {sreg}, {sreg}, {PA0 + i*PA_L}""")
    def mla(self, Lr, cbase):
        i = Lr >> 1
        self.qproj_phase(Lr)
        self.load_wuk(48, 72)
        self.q_prep(Lr)
        self.e(f"""v_lshrrev_b32 v79, 4, v0
s_lshl_b32 {sT0}, {sW}, 12
s_add_u32 {sT0}, {sT0}, {LS}
v_lshl_add_u32 v74, v79, 4, {sT0}
v_lshlrev_b32 v79, 3, v79
v_mov_b32 v75, {OOB}
v_and_b32 v73, 15, v0
v_cmp_eq_u32 vcc, 0, v73
v_cndmask_b32 v75, v75, v79, vcc
s_lshl_b32 {sT3}, {sH}, 10
s_lshl_b32 {sT0}, {sJ}, 7
s_add_u32 {sT3}, {sT3}, {sT0}
s_lshl_b32 {sT0}, {sW}, 5
s_add_u32 {sT3}, {sT3}, {sT0}
s_add_u32 {sT3}, {sT3}, {QA0 + i*QA_L}""")
        self.delay("d_q")
        top = self.lab("qpoll")
        self.e(f"{top}:")
        self.q_loads(8)
        self.e("s_waitcnt vmcnt(0)")
        self.stamp("q_got")
        self.q_reduce(8, top)
        self.e("s_waitcnt lgkmcnt(0)")
        for s in range(4):
            self.e(f"ds_read_b128 {vr(8+4*s,4)}, v74 offset:{s*64}")
        for s in range(4):
            self.e(f"s_waitcnt lgkmcnt({3-s})")
            self.e(f"v_mfma_f32_16x16x32_bf16 v[24:27], {vr(48+4*s,4)}, {vr(8+4*s,4)}, {'v[24:27]' if s else 0}")
        self.e(f"""v_mul_f32 v24, {sC}, v24
v_mul_f32 v25, {sC}, v25
v_mul_f32 v26, {sC}, v26
v_mul_f32 v27, {sC}, v27
v_cvt_pk_bf16_f32 v28, v24, v25
v_cvt_pk_bf16_f32 v29, v26, v27
buffer_store_dwordx2 v[28:29], v75, {WS}, {sT3} offen sc1""")
        self.stamp("qa_pub")
        self.e(f"""v_and_b32 v76, 15, v0
v_lshrrev_b32 v77, 4, v0
v_lshlrev_b32 v72, 10, v76
v_lshl_add_u32 v72, v77, 4, v72
s_and_b32 s76, {sR}, 1
s_lshl_b32 s76, s76, 14
s_lshl_b32 {sT0}, {sW}, 8
s_add_u32 s76, s76, {sT0}
s_add_u32 s76, s76, {QA0 + i*QA_L}
v_lshrrev_b32 v73, 3, v76
v_lshlrev_b32 v73, 11, v73
v_and_b32 v76, 7, v76
v_lshl_add_u32 v73, v76, 5, v73
v_lshrrev_b32 v76, 1, v77
v_lshl_add_u32 v73, v76, 8, v73
v_and_b32 v76, 1, v77
v_lshl_add_u32 v73, v76, 4, v73
v_add_u32 v73, {cbase}, v73
s_lshl_b32 {sT0}, {sW}, 12
s_add_u32 {sT0}, {sT0}, {LS}
v_lshl_add_u32 v74, v0, 4, {sT0}
v_xor_b32 v75, 0x1000, v74
v_xor_b32 v76, 0x2000, v74
v_xor_b32 v77, 0x3000, v74
s_mov_b32 {sCNT}, 0
s_waitcnt vmcnt(1)""")
        assert LS % 16384 == 0
        kread = lambda t, sc, dst: f"ds_read_b128 {vr(dst,4)}, v73 offset:{t*4096+(sc>>1)*1024+(sc&1)*512}"
        for t in range(2):
            for sc in range(4):
                self.e(kread(t, sc, 40 + (t*4+sc)*4))
        self.delay("d_qa")
        top = self.lab("qapoll")
        self.e(f"{top}:")
        for s in range(4):
            self.e(f"buffer_load_dwordx4 {vr(8+4*s,4)}, v72, {WS}, s76 offen offset:{s*64} sc1")
        self.e("s_waitcnt vmcnt(0) lgkmcnt(0)")
        self.stamp("qa_got")
        mf = lambda t, sc: f"v_mfma_f32_16x16x32_bf16 {vr(24+4*t,4)}, {vr(40+((t&1)*4+sc)*4,4)}, {vr(8+4*sc,4)}, {vr(24+4*t,4) if sc else 0}"
        chk = [f"v_max3_u32 v78, v8, v9, v10"] + [f"v_max3_u32 v78, v{11+2*k}, v{12+2*k}, v78" for k in range(6)] + ["v_max_u32 v78, v23, v78"]
        self.e(merge([mf(0, sc) for sc in range(4)], chk, per=2))
        self.e("v_cmp_eq_u32 vcc, -1, v78")
        self.retry(top)
        for sc in range(4): self.e(kread(2, sc, 40 + sc*4))
        for sc in range(4): self.e(mf(1, sc))
        for sc in range(4): self.e(kread(3, sc, 56 + sc*4))
        self.e("ds_write_b128 v74, v[24:27]")
        for sc in range(4):
            self.e(f"s_waitcnt lgkmcnt({8-sc})")
            self.e(mf(2, sc))
        self.e("ds_write_b128 v74, v[28:31] offset:1024")
        for sc in range(4):
            self.e(f"s_waitcnt lgkmcnt({5-sc})")
            self.e(mf(3, sc))
        self.e(f"""ds_write_b128 v74, v[32:35] offset:2048
ds_write_b128 v74, v[36:39] offset:3072
s_waitcnt lgkmcnt(0)
s_barrier""")
        for t in range(4):
            self.e(f"""ds_read_b128 {vr(8+4*t,4)}, v75 offset:{t*1024}
ds_read_b128 {vr(40+4*t,4)}, v76 offset:{t*1024}
ds_read_b128 {vr(56+4*t,4)}, v77 offset:{t*1024}""")
        self.pa_addr(72, i, "s77")
        self.e(f"""v_and_b32 v73, 31, v0
v_lshrrev_b32 v74, 5, v0
v_lshlrev_b32 v74, 11, v74
v_lshl_add_u32 v73, v73, 3, v74
v_add_u32 v73, {cbase}, v73""")
        for t in range(4):
            self.e(f"s_waitcnt lgkmcnt({9-3*t})")
            for k in (0, 2):
                self.e(f"v_pk_add_f32 {vr(24+4*t+k,2)}, {vr(24+4*t+k,2)}, {vr(8+4*t+k,2)}")
                self.e(f"v_pk_add_f32 {vr(40+4*t+k,2)}, {vr(40+4*t+k,2)}, {vr(56+4*t+k,2)}")
            for k in (0, 2):
                self.e(f"v_pk_add_f32 {vr(24+4*t+k,2)}, {vr(24+4*t+k,2)}, {vr(40+4*t+k,2)}")
        def tread(q):
            tau, s, b = q >> 2, (q >> 1) & 1, q & 1
            T = 2*tau + b; dst = 40 + (q & 7) * 4
            return [f"ds_read_b64_tr_b16 {vr(dst+2*hh,2)}, v73 offset:{(4*s+2*hh)*2048+(T>>2)*1024+(T&3)*256}" for hh in range(2)]
        pre = sum([tread(q) for q in range(7)], [])
        mx = [f"v_max3_f32 v78, v24, v25, v26"] + [f"v_max3_f32 v78, v{27+2*k}, v{28+2*k}, v78" for k in range(6)] + ["v_max_f32 v78, v39, v78"]
        mx += L("""v_mov_b32 v79, v78
v_permlane16_swap_b32 v78, v79
v_max_f32 v78, v78, v79
v_mov_b32 v79, v78
v_permlane32_swap_b32 v78, v79
v_max_f32 v78, v78, v79
v_ceil_f32 v78, v78""")
        self.e(merge(mx, pre, per=1))
        for k in range(16): self.e(f"v_sub_f32 v{24+k}, v{24+k}, v78")
        for k in range(16): self.e(f"v_exp_f32 v{24+k}, v{24+k}")
        for k in range(8): self.e(f"v_cvt_pk_bf16_f32 v{8+k}, v{24+2*k}, v{25+2*k}")
        for k in range(4): self.e(f"v_pk_add_f32 {vr(16+2*k,2)}, {vr(24+2*k,2)}, {vr(32+2*k,2)}")
        ls = L(f"""v_pk_add_f32 v[16:17], v[16:17], v[20:21]
v_pk_add_f32 v[18:19], v[18:19], v[22:23]
v_pk_add_f32 v[16:17], v[16:17], v[18:19]
v_add_f32 v79, v16, v17
v_mov_b32 v77, v79
v_permlane16_swap_b32 v79, v77
v_add_f32 v79, v79, v77
v_mov_b32 v77, v79
v_permlane32_swap_b32 v79, v77
v_add_f32 v79, v79, v77
v_lshlrev_b32 v77, 7, v0
v_mov_b32 v76, {OOB}
v_cmp_gt_u32 vcc, 16, v0
v_cndmask_b32 v77, v76, v77, vcc
s_cmp_eq_u32 {sW}, 0
s_cselect_b32 {sT0}, 0, {OOB}
v_add_u32 v77, {sT0}, v77
s_lshl_b32 {sT3}, {sX}, 12
s_and_b32 {sT0}, {sR}, 1
s_lshl_b32 {sT0}, {sT0}, 11
s_add_u32 {sT3}, {sT3}, {sT0}
s_lshr_b32 {sT0}, {sR}, 1
s_lshl_b32 {sT0}, {sT0}, 3
s_add_u32 {sT3}, {sT3}, {sT0}
s_add_u32 {sT3}, {sT3}, {MLA0 + i*MLA_L}
buffer_store_dwordx2 v[78:79], v77, {WS}, {sT3} offen {self.ist}""")
        def outp(tau):
            acc = 24 + (tau & 1) * 8; o = 16 + (tau & 1) * 4
            return [f"v_cvt_pk_bf16_f32 v{o+k}, v{acc+2*k}, v{acc+2*k+1}" for k in range(4)] + \
                   [f"buffer_store_dwordx4 {vr(o,4)}, v72, {WS}, s77 offen offset:{tau*64} {self.ist}"]
        seq = []
        for q in range(16):
            tau, s, b = q >> 2, (q >> 1) & 1, q & 1
            acc = 24 + (tau & 1) * 8 + b * 4
            issued = min(q + 7, 16)
            seq.append(f"s_waitcnt lgkmcnt({2*(issued-q-1)})")
            seq.append(f"v_mfma_f32_16x16x32_bf16 {vr(acc,4)}, {vr(40+(q&7)*4,4)}, {vr(8+4*s,4)}, {vr(acc,4) if s else 0}")
            if q + 7 < 16: seq += tread(q + 7)
            if q < 6:
                seq += ls[q*5:(q+1)*5] if q < 5 else ls[25:]
            if q in (6, 10, 14): seq += outp((q >> 2) - 1)
        seq += outp(3)
        self.e(seq)
        self.stamp("pa_pub")
        self.dma_wuv(72)
        self.dma_wo(WOB, 72)
        self.e(f"""v_and_b32 v76, 15, v0
v_lshrrev_b32 v77, 4, v0
v_lshlrev_b32 v72, 12, v77
v_lshl_add_u32 v72, v76, 4, v72
v_lshlrev_b32 v73, 5, v77
s_lshl_b32 s76, {sX}, 5
s_add_u32 s76, s76, {sR}
s_lshl_b32 s77, s76, 7
s_add_u32 s77, s77, {MLA0 + i*MLA_L}
s_lshl_b32 s76, s76, 14
s_lshl_b32 {sT0}, {sW}, 8
s_add_u32 s76, s76, {sT0}
s_add_u32 s76, s76, {PA0 + i*PA_L}
v_and_b32 v78, 1, v76
v_lshlrev_b32 v78, 4, v78
v_mov_b32 v79, 0xffff
v_lshlrev_b32 v78, v78, v79
v_lshrrev_b32 v79, 1, v76""")
        for k in range(4):
            self.e(f"v_cmp_eq_u32 vcc, {k}, v79\nv_cndmask_b32 v{48+k}, 0, v78, vcc")
        self.e(f"""v_lshrrev_b32 v74, 3, v76
v_lshlrev_b32 v74, 10, v74
v_bfe_u32 v78, v76, 2, 1
v_lshl_add_u32 v74, v78, 6, v74
v_lshl_add_u32 v74, v77, 5, v74
v_and_b32 v78, 3, v76
v_lshl_add_u32 v74, v78, 3, v74
v_mov_b32 v75, {OOB}
v_cmp_gt_u32 vcc, 32, v0
v_cndmask_b32 v74, v75, v74, vcc
s_lshl_b32 {sT3}, {sR}, 13
s_lshl_b32 {sT0}, {sW}, 11
s_add_u32 {sT3}, {sT3}, {sT0}
s_lshl_b32 {sT0}, {sX}, 7
s_add_u32 {sT3}, {sT3}, {sT0}
s_add_u32 {sT3}, {sT3}, {PB0 + i*PB_L}
s_lshl_b32 {sT2}, {sR}, 10
s_add_u32 {sT2}, {sT2}, {sT0}
s_add_u32 {sT2}, {sT2}, {MLB0 + i*MLB_L}
s_cmp_eq_u32 {sW}, 0
s_cselect_b32 {sT0}, 0, {OOB}
v_writelane_b32 v75, {sT0}, 0
s_mov_b32 {sCNT}, 0""")
        self.delay("d_pa")
        top = self.lab("papoll")
        self.e(f"""{top}:
buffer_load_dwordx4 v[24:27], v73, {WS}, s77 offen sc1
buffer_load_dwordx4 v[28:31], v73, {WS}, s77 offen offset:16 sc1""")
        for k in range(4):
            self.e(f"buffer_load_dwordx4 {vr(8+4*k,4)}, v72, {WS}, s76 offen offset:{k*1024} sc1")
        self.e(f"""s_waitcnt vmcnt(4)
v_max3_f32 v56, v24, v26, v28
v_max_f32 v56, v56, v30
v_mov_b32 v57, v56
v_permlane16_swap_b32 v56, v57
v_max_f32 v56, v56, v57
v_mov_b32 v57, v56
v_permlane32_swap_b32 v56, v57
v_max_f32 v56, v56, v57""")
        for k in range(4): self.e(f"v_sub_f32 v{24+2*k}, v{24+2*k}, v56")
        for k in range(4): self.e(f"v_exp_f32 v{24+2*k}, v{24+2*k}")
        for k in range(4): self.e(f"v_cvt_pk_bf16_f32 v{60+k}, v{24+2*k}, v{24+2*k}")
        for k in range(4):
            for q in range(4): self.e(f"v_and_b32 v{32+4*k+q}, v{60+k}, v{48+q}")
        self.e("s_waitcnt vmcnt(0)")
        self.stamp("pa_got")
        mfs = [f"v_mfma_f32_16x16x32_bf16 v[52:55], {vr(32+4*k,4)}, {vr(8+4*k,4)}, {'v[52:55]' if k else 0}" for k in range(4)]
        lx = L("""v_mul_f32 v57, v24, v25
v_fmac_f32 v57, v26, v27
v_fmac_f32 v57, v28, v29
v_fmac_f32 v57, v30, v31
v_mov_b32 v58, v57
v_permlane16_swap_b32 v57, v58
v_add_f32 v57, v57, v58
v_mov_b32 v58, v57
v_permlane32_swap_b32 v57, v58
v_add_f32 v57, v57, v58""")
        self.e(merge(mfs, lx, per=2))
        self.e("""v_cmp_u_f32 vcc, v52, v57
v_cvt_pk_bf16_f32 v58, v52, v53
v_cvt_pk_bf16_f32 v59, v54, v55""")
        self.retry(top)
        self.e(f"""buffer_store_dwordx2 v[58:59], v74, {WS}, {sT3} offen sc1
buffer_store_dwordx2 v[56:57], v75, {WS}, {sT2} offen sc1""")
        self.stamp("pb_pub")
        self.tr_w(24, 2, C_WQ)
        self.tr_w(40, 4, C_WO)
        self.e("s_waitcnt lgkmcnt(0)")
        if Lr == 1:
            self.dma_wq(WQA, 72)
            self.dma_wo(WO, 72)
        self.e(f"""v_and_b32 v76, 7, v0
v_lshlrev_b32 v76, 7, v76
v_lshrrev_b32 v77, 4, v0
v_lshl_add_u32 v76, v77, 4, v76
v_and_b32 v77, 1, v77
v_lshl_add_u32 v77, v77, 2, v0
v_and_b32 v77, 7, v77
v_lshlrev_b32 v77, 7, v77
s_lshl_b32 s76, {sH}, 3
s_add_u32 s76, s76, {sJ}
s_lshl_b32 s76, s76, 10
s_add_u32 s76, s76, {PB0 + i*PB_L}
s_lshl_b32 s77, {sH}, 10
s_add_u32 s77, s77, {MLB0 + i*MLB_L}
v_lshlrev_b32 v78, 1, v0
v_and_b32 v79, 33, v0
v_cmp_eq_u32 vcc, 0, v79
v_mov_b32 v79, {OOB}
v_cndmask_b32 v78, v79, v78, vcc
s_mul_i32 {sT3}, {sH}, {OP_H}
s_lshl_b32 {sT0}, {sJ}, 8
s_add_u32 {sT3}, {sT3}, {sT0}
s_lshl_b32 {sT0}, {sW}, 6
s_add_u32 {sT3}, {sT3}, {sT0}
s_add_u32 {sT3}, {sT3}, {OP0 + Lr*OP_L}
s_mov_b32 {sCNT}, 0""")
        self.delay("d_pb")
        top = self.lab("pbpoll")
        self.e(f"""{top}:
buffer_load_dwordx2 v[72:73], v77, {WS}, s77 offen sc1
buffer_load_dwordx4 v[8:11], v76, {WS}, s76 offen sc1
buffer_load_dwordx4 v[12:15], v76, {WS}, s76 offen offset:64 sc1
s_waitcnt vmcnt(0)""")
        self.stamp("pb_got")
        mf = []
        for s in range(2):
            for t in range(2):
                mf.append(f"v_mfma_f32_16x16x32_bf16 {vr(16+4*t,4)}, {vr(8+4*s,4)}, {vr(24+(s*2+t)*4,4)}, {vr(16+4*t,4) if s else 0}")
        self.e(merge(mf, self.mlweights(72, 8), per=2))
        self.e(self.rowsum(16, 8, 12))
        self.e("""v_cmp_u_f32 vcc, v12, v12
v_mov_b32_dpp v13, v12 quad_perm:[1,1,3,3] row_mask:0xf bank_mask:0xf
v_cvt_pk_bf16_f32 v13, v12, v13""")
        self.retry(top)
        self.e(f"buffer_store_dword v13, v78, {WS}, {sT3} offen {self.ist}")
        self.stamp("op_pub")
        self.oproj(Lr, False)

    def kload(self, i):
        b, rho, s = i >> 3, (i >> 1) & 3, i & 1
        o = []
        if i % 8 == 0: o.append(f"s_add_u32 s78, {sKV}, {b*32768}")
        o.append(f"buffer_load_dwordx4 {ar(i*4,4)}, v72, {K_}, s78 offen offset:{rho*256+s*128} nt")
        self.e(o)
    def slot(self, u): return (u - NRES) % 5
    def vdma(self, u):
        b, dh = u >> 1, u & 1
        for gp in range(2):
            self.e(f"""s_add_u32 m0, {sLV}, {self.slot(u)*4096 + gp*2048}
s_add_u32 s78, {sKV}, {b*32768 + gp*4096 + dh*128}
buffer_load_dwordx4 v73, {V_}, s78 offen nt lds
buffer_load_dwordx4 v73, {V_}, s78 offen offset:1024 nt lds""")
    def vtr(self, u, dst, acc=False):
        R = ar if acc else vr
        return [f"ds_read_b64_tr_b16 {R(dst+4*T+2*hh,2)}, v3 offset:{self.slot(u)*4096+hh*1024+T*256}" for T in range(4) for hh in range(2)]
    def pvm(self, u, src, preg, first, acc=False):
        R = ar if acc else vr
        dh = u & 1
        return [f"v_mfma_f32_16x16x32_bf16 {vr(40+16*dh+4*T,4)}, {vr(preg,4)}, {R(src+4*T,4)}, {0 if first else vr(40+16*dh+4*T,4)}" for T in range(4)]

    def prologue(self):
        self.mode = "pre"
        ptrs = [(K_, 8, 0x4000000), (V_, 16, 0x4000000), (WS, 104, 0x10000000), (X0, 0, 1152), (WQA, 24, 576*8192), (DBG, 96, 256),
                (WO, 32, 4096*1152), (CKV, 48, 8192*1024), (WQB, 56, 576*8192), (WUK, 64, 512*8192), (WUV, 72, 512*8192),
                (WOB, 80, 4096*1152), (OUT, 88, 1152)]
        base = lambda srd: int(srd[2:srd.index(":")])
        self.e("s_cmp_ge_u32 s2, 256\ns_cbranch_scc0 L_go\ns_endpgm\nL_go:")
        for srd, off, sz in ptrs:
            self.e(f"s_load_dwordx2 s[{base(srd)}:{base(srd)+1}], s[0:1], {off}")
        self.e(f"""v_lshrrev_b32 v1, 6, v0
v_and_b32 v0, 63, v0
v_readfirstlane_b32 {sW}, v1
s_and_b32 {sX}, s2, 7
s_lshr_b32 {sR}, s2, 3
s_lshl_b32 {sKV}, {sX}, 5
s_add_u32 {sKV}, {sKV}, {sR}
s_lshr_b32 {sH}, {sKV}, 3
s_and_b32 {sJ}, {sR}, 7
s_lshl_b32 {sKV}, {sKV}, 18
s_lshl_b32 {sT0}, {sW}, 13
s_add_u32 {sKV}, {sKV}, {sT0}
v_and_b32 v72, 7, v0
v_lshlrev_b32 v72, 10, v72
v_bfe_u32 v73, v0, 3, 1
v_lshl_add_u32 v72, v73, 6, v72
v_lshrrev_b32 v73, 4, v0
v_lshl_add_u32 v72, v73, 4, v72""")
        for srd, off, sz in ptrs:
            self.e(f"s_mov_b32 s{base(srd)+2}, {sz:#x}\ns_mov_b32 s{base(srd)+3}, 0x20000")
        self.e("s_waitcnt lgkmcnt(0)")
        if self.stamps: self.e("v_mov_b32 v1, 0")
        self.stamp("start")
        for i in range(8): self.kload(i)
        self.e(f"""s_mul_i32 {sLV}, {sW}, {LV_W}
s_lshl_b32 {sLC}, {sW}, 14
s_add_u32 {sLC}, {sLC}, {LC}
s_cmp_lt_u32 {sJ}, 6
s_cselect_b32 {sOffQ}, 0, {OOB}
s_cmp_lt_u32 {sR}, 18
s_cselect_b32 {sOffO}, 0, {OOB}
s_getreg_b32 {sXCC}, hwreg(HW_REG_XCC_ID, 0, 3)
v_lshl_add_u32 v2, v0, 3, {sLC}
v_and_b32 v3, 31, v0
v_lshrrev_b32 v8, 5, v0
v_lshlrev_b32 v8, 11, v8
v_lshl_add_u32 v3, v3, 3, v8
v_add_u32 v3, {sLV}, v3
v_mov_b32 v8, -1
v_mov_b32 v9, -1
v_mov_b32 v10, -1
v_mov_b32 v11, -1
v_lshlrev_b32 v12, 4, v0
s_lshl_b32 {sT0}, s2, 13
s_lshl_b32 {sT1}, {sW}, 11
s_add_u32 {sT0}, {sT0}, {sT1}
buffer_store_dwordx4 v[8:11], v12, {WS}, {sT0} offen sc1
buffer_store_dwordx4 v[8:11], v12, {WS}, {sT0} offen offset:1024 sc1
v_and_b32 v13, 3, v0
v_lshlrev_b32 v13, 6, v13
v_lshrrev_b32 v14, 4, v0
v_lshl_add_u32 v13, v14, 4, v13
v_add_u32 v13, {sOffQ}, v13
s_mul_i32 {sT0}, {sJ}, 192
v_mov_b32 v4, 0x3f803f80
v_mov_b32 v5, 0x3f803f80
v_mov_b32 v6, 0x3f803f80
v_mov_b32 v7, 0x3f803f80
s_mov_b32 exec_lo, 0x77777777
s_mov_b32 exec_hi, 0x77777777
buffer_load_dwordx4 v[4:7], v13, {X0}, {sT0} offen
s_mov_b64 exec, -1""")
        self.dma_wq(WQA, 14)
        self.e(f"""s_getpc_b64 s[56:57]
L_pc:
s_lshl_b32 {sT0}, {sW}, 13
v_lshl_add_u32 v16, v0, 7, {sT0}
v_min_u32 v16, L_code_end-L_pc, v16
v_mov_b32 v17, s57
v_add_co_u32 v16, vcc, s56, v16
v_addc_co_u32 v17, vcc, 0, v17, vcc
global_load_dword v18, v[16:17], off""")
        for i in range(8, 24): self.kload(i)
        self.e(f"""s_waitcnt vmcnt(16)
s_barrier
s_and_b32 {sT0}, {sXCC}, 3
s_lshl_b32 {sT0}, {sT0}, 3
s_lshl_b32 {sT0}, 1, {sT0}
v_mov_b32 v8, {sT0}
s_lshr_b32 {sT1}, {sXCC}, 2
s_lshl_b32 {sT2}, {sX}, 1
s_add_u32 s79, {sT1}, {sT2}
s_lshl_b32 {sT1}, s79, 2
s_cmp_eq_u32 {sW}, 0
s_cselect_b32 {sT1}, {sT1}, {OOB}
v_mov_b32 v9, {OOB}
v_writelane_b32 v9, {sT1}, 0
buffer_atomic_add v8, v9, {DBG}, 0 offen sc1""")
        self.tr_w(40, 3, C_WQ)
        self.e("s_waitcnt lgkmcnt(0)")
        self.qproj_core(4, 40, 12, 64)
        self.qp_addr(74, 75, 0)
        for i in range(24, 40): self.kload(i)
        self.e(f"""s_waitcnt vmcnt(16)
v_and_b32 v8, 15, v0
v_lshlrev_b32 v8, 2, v8
s_mov_b32 {sCNT}, 0
buffer_load_dword v9, v8, {DBG}, 0 offen sc1""")
        for i in range(40, 48): self.kload(i)
        self.e(f"""s_waitcnt vmcnt(8)
s_branch L_cnt_chk
L_cnt_poll:
buffer_load_dword v9, v8, {DBG}, 0 offen sc1
s_waitcnt vmcnt(0)
L_cnt_chk:
v_sad_u8 v10, v9, 0, 0
v_add_u32_dpp v10, v10, v10 row_ror:1 row_mask:0xf bank_mask:0xf
v_add_u32_dpp v10, v10, v10 row_ror:2 row_mask:0xf bank_mask:0xf
v_add_u32_dpp v10, v10, v10 row_ror:4 row_mask:0xf bank_mask:0xf
v_add_u32_dpp v10, v10, v10 row_ror:8 row_mask:0xf bank_mask:0xf
v_cmp_ne_u32 vcc, 0x100, v10""")
        self.retry("L_cnt_poll")
        self.e(f"""v_readlane_b32 {sT0}, v9, s79
s_and_b32 {sT1}, {sXCC}, 3
s_lshl_b32 {sT1}, {sT1}, 3
s_lshr_b32 {sT0}, {sT0}, {sT1}
s_and_b32 {sT0}, {sT0}, 0xff
s_cmp_eq_u32 {sT0}, {99 if self.cfg['force_slow'] else 32}
s_cbranch_scc1 L_fast
s_branch L_slow
""")
        self.flush_stubs()

    def body(self, mode):
        self.mode = mode
        self.ist = "" if mode == "fast" else "sc1"
        self.e(f"L_{mode}:")
        self.stamp("mode")
        self.qp_store(64, 74, 75)
        for i in range(48, 64): self.kload(i)
        self.e(f"""v_bfe_u32 v73, v0, 3, 1
v_bfe_u32 v74, v0, 1, 2
v_lshl_add_u32 v73, v73, 3, v74
v_lshlrev_b32 v73, 8, v73
v_lshrrev_b32 v74, 4, v0
v_lshl_add_u32 v73, v74, 5, v73
v_and_b32 v74, 1, v0
v_lshl_add_u32 v73, v74, 4, v73""")
        self.q_prep(0)
        self.e("s_waitcnt vmcnt(8)")
        self.q_loads(8)
        for u in range(5): self.vdma(u)
        chk = self.lab("qchk"); top = self.lab("qpoll")
        self.e(f"s_waitcnt vmcnt(20)\ns_branch {chk}\n{top}:")
        self.q_loads(8)
        self.e(f"s_waitcnt vmcnt(0)\n{chk}:")
        self.stamp("q_got")
        self.q_reduce(8, top)
        self.qk()
        self.softmax()
        self.e(self.lsum())
        self.stamp("sm_done")
        for u in range(16):
            if u <= NRES - 1: n = 16
            else: n = 4 * (15 - u) + 14
            if u in (5, 6, 7, 8): n += 8
            if u == 4: n += 8
            self.e(f"s_waitcnt vmcnt({n})")
            if u % 2 == 0: self.e(f"ds_read_b128 v[74:77], v78 offset:{512 + (u>>1)*64}")
            dst = VRES + 16 * u if u < NRES else 16
            self.e(self.vtr(u, dst))
            self.e("s_waitcnt lgkmcnt(0)")
            if u + 5 < 16: self.vdma(u + 5)
            self.e(self.pvm(u, dst, 74, u < 2))
            if u == 3:
                self.e("v_mov_b32 v8, -1\nv_mov_b32 v9, -1\nv_mov_b32 v10, -1\nv_mov_b32 v11, -1")
                self.pa_addr(12, 0, "s77")
                self.e(f"s_add_u32 s76, s77, {PA_L}")
                for so in ("s77", "s76"):
                    for tau in range(4):
                        self.e(f"buffer_store_dwordx4 v[8:11], v12, {WS}, {so} offen offset:{tau*64} {self.ist}")
            if u == 8:
                self.e("s_barrier")
                self.e(self.mlcomb(0))
            if u == NRES - 1:
                self.dma_wo(WO, 32)
                self.dma_wq(WQB, 32)
        self.stamp("pv_done")
        self.o_finish()
        self.e("s_waitcnt vmcnt(8)")
        self.tr_w(40, 4, C_WO)
        self.oproj(0, True)
        self.tr_w(40, 3, C_WQ)
        self.e("s_waitcnt lgkmcnt(0)")
        self.dma_ckv(72, sLC)
        self.mla(1, sLC)
        self.tr_w(40, 3, C_WQ)
        self.e("s_waitcnt lgkmcnt(0)")
        self.dma_wq(WQB, 72)
        self.qproj_phase(2)
        self.q_prep(2)
        self.delay("d_q")
        top = self.lab("qpoll")
        self.e(f"{top}:")
        self.q_loads(8)
        self.e("s_waitcnt vmcnt(0)")
        self.stamp("q_got")
        self.q_reduce(8, top)
        side = sum([self.vtr(u, (u - NRES) * 16, acc=True) for u in range(NRES, 16)], [])
        self.qk(side)
        self.softmax()
        self.e("s_waitcnt lgkmcnt(0)")
        self.stamp("sm_done")
        pr = lambda b: 16 + (b & 3) * 4
        pread = lambda b: f"ds_read_b128 {vr(pr(b),4)}, v78 offset:{512 + b*64}"
        for b in range(3): self.e(pread(b))
        ls = self.lsum(); mc = self.mlcomb(2)
        for b in range(8):
            mf = []
            for u in (2*b, 2*b+1):
                mf += self.pvm(u, VRES + 16*u if u < NRES else (u - NRES)*16, pr(b), b == 0, acc=(u >= NRES))
            self.e("s_waitcnt lgkmcnt(2)" if b == 0 else "s_waitcnt lgkmcnt(0)")
            if b + 3 < 8: mf.insert(1, pread(b + 3))
            if b == 0: mf = merge(mf, ls, per=2)
            if b == 2: mf = ["s_barrier"] + merge(mf, mc[:16], per=2)
            if b == 3: mf = merge(mf, mc[16:32], per=2)
            if b == 4: mf = merge(mf, mc[32:], per=2)
            self.e(mf)
            if b == 5: self.dma_ckv(72, sLV)
        self.stamp("pv_done")
        self.o_finish()
        self.tr_w(40, 4, C_WO)
        self.oproj(2, True)
        self.tr_w(40, 3, C_WQ)
        self.mla(3, sLV)
        fin = self.lab("fin")
        self.e(f"""s_sub_u32 {sT0}, {sR}, 24
s_cmp_lt_u32 {sT0}, 6
s_cselect_b32 {sT0}, {sX}, 1
s_or_b32 {sT0}, {sT0}, {sW}
s_cmp_eq_u32 {sT0}, 0
s_cbranch_scc1 {fin}""")
        self.exit()
        self.e(f"{fin}:")
        self.y_prep(3)
        self.e(f"""v_and_b32 v74, 15, v0
v_lshlrev_b32 v75, 6, v74
v_lshrrev_b32 v73, 4, v0
v_lshl_add_u32 v75, v73, 4, v75
v_mov_b32 v73, {OOB}
v_cmp_gt_u32 vcc, 3, v74
v_cndmask_b32 v75, v73, v75, vcc
s_mul_i32 {sT3}, {sJ}, 192""")
        self.delay("d_y")
        top = self.y_poll()
        self.e("""v_pk_add_f32 v[20:21], v[20:21], v[22:23]
v_pk_add_f32 v[24:25], v[24:25], v[26:27]
v_pk_add_f32 v[20:21], v[20:21], v[24:25]
v_cmp_u_f32 vcc, v20, v21""")
        self.retry(top)
        self.e(f"buffer_store_dwordx4 v[8:11], v75, {OUT}, {sT3} offen")
        self.stamp("done")
        self.exit()
        self.flush_stubs()

    def build(self):
        self.prologue()
        n0 = self.nst
        self.body("fast")
        self.e("L_code_end:")
        self.nst = n0
        self.body("slow")
        if self.stamps:
            self.e(f"""L_dump:
v_lshlrev_b32 v8, 2, v0
s_lshl_b32 {sT0}, s2, 2
s_add_u32 {sT0}, {sT0}, {sW}
s_lshl_b32 {sT0}, {sT0}, 8
s_add_u32 {sT0}, {sT0}, {STAMP0}
buffer_store_dword v1, v8, {WS}, {sT0} offen
s_endpgm""")
        return fix(self.a.text(), verbose=True)

HEADER = open(__file__.rsplit("/", 1)[0] + "/header.txt").read() if "/" in __file__ else open("header.txt").read()

def make(path, stamps=False, cfg=None):
    g = Gen(stamps, cfg)
    txt = wrap(g.build(), grid=256, block=256, lds=163840, vgpr=512, accum=256, sgpr=102, header=HEADER)
    open(path, "w").write(txt)
    return g.snames

if __name__ == "__main__":
    cfg = {}
    for kv in sys.argv[3:]:
        k, v = kv.split("=")
        cfg[k] = v.replace("+", " ") if k == "wnt" else int(v)
    print(make(sys.argv[1], stamps=int(sys.argv[2]), cfg=cfg))
```

```python
import sys, math, struct
from asmlib import *
from hazard import fix

QP_H = 6272; QP_L = 32 * QP_H
OP_H = 2176; OP_L = 32 * OP_H
Y_L = 18432
Y0 = 0
QA0 = Y0 + 4 * Y_L;  QA_L = 32768
PB0 = QA0 + 2 * QA_L; PB_L = 262144
MLB0 = PB0 + 2 * PB_L; MLB_L = 32768
OPz = MLB0 + 2 * MLB_L
QP0 = OPz + OP_L
assert QP0 + QP_L <= 0x100000
OPr = QP0 + 4 * QP_L
def OPo(L): return OPz if L == 0 else OPr + (L - 1) * OP_L
MLA0 = OPr + 3 * OP_L
assert MLA0 % 128 == 0 and MLA0 + 32768 <= 0x200000
PA0 = 0x200000
STAMP0 = 0x1000000
OOB = 0x40000000
LV = 0; LV_W = 20480
LC = 81920; LC_W = 16384
LS = 147456
C_WQ = 0; C_WO = 6144
NRES = 11
VRES = 256 - 16 * NRES
SCALE = 128 ** -0.5 * math.log2(math.e)

def f2u(x): return "0x%08x" % struct.unpack("<I", struct.pack("<f", x))[0]

K_, V_, WQA, WO, CKV, WQB, WUK, WUV, WOB, WS, X0, OUT, DBG = [f"s[{4+4*i}:{7+4*i}]" for i in range(13)]
sW, sX, sR, sH, sJ, sKV, sLV, sLC, sOffQ, sOffO = "s3", "s60", "s61", "s62", "s63", "s64", "s65", "s66", "s67", "s68"
sXCC = "s69"
sT0, sT1, sT2, sT3, sT4 = "s70", "s71", "s72", "s73", "s74"
sM = "s75"
sP0, sP1 = "s76", "s77"
sCNT = "s80"
sC = "s81"
sHG, sKC, sLS, sW0 = "s86", "s87", "s88", "s89"
sB0, sB1, sB2 = "s90", "s91", "s92"
sQ = ["s94", "s95", "s96", "s97"]
sBq, sBo, sBc = "s98", "s99", "s93"
POLL_MAX = 0x20000
MF = "v_mfma_f32_16x16x32_bf16"
DP = "row_mask:0xf bank_mask:0xf"

def vr(a, n=1): return f"v{a}" if n == 1 else f"v[{a}:{a+n-1}]"
def ar(a, n=1): return f"a{a}" if n == 1 else f"a[{a}:{a+n-1}]"
def L(s): return [x.strip() for x in s.strip("\n").split("\n") if x.strip()]

def merge(main, side, every=1, per=2, start=0):
    out = []; side = list(side); k = 0
    for i, m in enumerate(main):
        out.append(m)
        if i >= start and (i - start) % every == every - 1:
            for _ in range(per):
                if k < len(side): out.append(side[k]); k += 1
    out += side[k:]
    return out

DEF = dict(t2=1, d_h1=0, d_y=6, d_yi=12, d_q=0, d_qa=8, d_pa=0, d_pb=6, bo=0, force_slow=0, kd=8, la=3,
           h_s0="two", h_s2="twqb", h_s4="wo!.twuk", h_s5="tckv", h_s6="wqb", h_s7="tpa", h_s9="cpa",
           h_idle0="", h_y0="wuk.ckvb!", h_qa1="ckva!", h_p41="twuv.twob", h_pb1="wuv.wob",
           h_idle1="t56wo", h_y1="wqa!", h_qk2="wo!.wqb!", h_pv2="ckv!", h_idle2="", h_y2="cpa.wuk!.wob!", h_qa3="wuv!", h_p43="", h_pb3="")

class Gen:
    def __init__(self, stamps=False, cfg=None):
        self.a = Asm(); self.stamps = stamps; self.nst = 0; self.snames = []
        self.cfg = dict(DEF); self.cfg.update(cfg or {})
        self.uid = 0; self.stubs = []; self.vm = []; self.tag = None
    def e(self, s, tag=None):
        if isinstance(s, list): s = "\n".join(s)
        if not s.strip(): return
        out = []
        for l in s.split("\n"):
            l = l.strip()
            if l.startswith("@wait "):
                l = self.waitstr(l.split()[1])
            t = tag
            if "#" in l:
                l, t = l.split("#"); l = l.strip()
            if l.startswith(("buffer_", "global_")): self.vm.append(t)
            if l.startswith("s_waitcnt") and "vmcnt(0)" in l: self.vm = []
            out.append(l)
        self.a("\n".join(out))
    def waitstr(self, tags):
        idx = [i for i, t in enumerate(self.vm) if t in tags.split(",")]
        if not idx: return ""
        n = len(self.vm) - 1 - max(idx)
        return f"s_waitcnt vmcnt({n})" if n <= 62 else ""
    def wait(self, tags): self.e("@wait " + tags)
    def lab(self, n):
        self.uid += 1
        return f"L_{n}_{self.uid}"
    def stamp(self, name):
        if not self.stamps: return
        k = self.nst; self.nst += 1
        if self.mode != "slow": self.snames.append(name)
        if k > 0:
            self.e(f"s_waitcnt lgkmcnt(0)\nv_writelane_b32 v1, s{82+2*((k-1)&1)}, {k-1}")
        self.e(f"s_memrealtime s[{82+2*(k&1)}:{83+2*(k&1)}]")
    def exit(self):
        if self.stamps:
            k = self.nst
            self.e(f"s_waitcnt lgkmcnt(0)\nv_writelane_b32 v1, s{82+2*((k-1)&1)}, {k-1}\ns_branch L_dump")
        else:
            self.e("s_endpgm")
    def delay(self, key):
        d = self.cfg.get(key, 0)
        if d: self.e(f"s_sleep {d}")
    def retry(self, loads, back, pre=()):
        st = self.lab("retry")
        self.e(f"s_cbranch_vccnz {st}")
        if self.stamps and self.mode != "pre" and self.nret < 17:
            self.e(f"v_writelane_b32 v1, {sCNT}, {47 + self.nret}"); self.nret += 1
        bo = self.cfg["bo"]
        self.stubs.append([f"{st}:", f"s_add_u32 {sCNT}, {sCNT}, 1", f"s_cmp_ge_u32 {sCNT}, {POLL_MAX}", "s_cbranch_scc1 L_abort",
                           f"s_sleep {bo}" if bo else "s_nop 3"] + [l.split("#")[0] for l in loads] + list(pre) +
                          ["s_waitcnt vmcnt(0)", f"s_branch {back}"])
    def flush_stubs(self):
        for s in self.stubs: self.a("\n".join(s))
        self.stubs = []

    def abl(self, v, first=False):
        if self.cfg.get("now") and not first: return [f"v_add_u32 v{v}, {OOB}, v{v}"]
        return []
    def dma_voff(self, v, rs, offreg):
        t = v + 1
        o = L(f"""v_bfe_u32 v{v}, v0, 3, 2
v_bfe_u32 v{t}, v0, 1, 2
v_lshl_add_u32 v{v}, v{v}, 3, v{t}
v_mul_u32_u24 v{v}, {rs}, v{v}
v_lshrrev_b32 v{t}, 5, v0
v_lshl_add_u32 v{v}, v{t}, 5, v{v}
v_and_b32 v{t}, 1, v0
v_lshl_add_u32 v{v}, v{t}, 4, v{v}""")
        if offreg: o.append(f"v_add_u32 v{v}, {offreg}, v{v}")
        return o
    def dma_w(self, v, srd, sbase, rs, nsteps, coff, tag):
        o = []
        for s in range(nsteps):
            for hh in range(2):
                o += [f"s_add_u32 m0, {sLC}, {coff + (s*2+hh)*1024}", f"s_add_u32 {sB1}, {sbase}, {(32*s+4*hh)*rs}",
                      f"buffer_load_dwordx4 v{v}, {srd}, {sB1} offen {self.pol} lds #{tag}"]
        return o
    def dma_wq(self, srd, v, first=False):
        return self.dma_voff(v, 8192, sOffQ) + self.abl(v, first) + self.dma_w(v, srd, sBq, 8192, 3, C_WQ, "cwq")
    def dma_wo(self, srd, v):
        return self.dma_voff(v, 1152, sOffO) + self.abl(v) + self.dma_w(v, srd, sBo, 1152, 4, C_WO, "cwo")
    def dma_wuv(self, v):
        return self.dma_voff(v, 8192, None) + self.abl(v) + L(f"""s_lshl_b32 {sB0}, {sJ}, 19
s_lshl_b32 {sB1}, {sH}, 8
s_add_u32 {sB0}, {sB0}, {sB1}
s_lshl_b32 {sB1}, {sW}, 6
s_add_u32 {sB0}, {sB0}, {sB1}""") + self.dma_w(v, WUV, sB0, 8192, 2, C_WQ, "cwq")
    def dma_ckv(self, v, lbase, kbs):
        t = v + 1
        o = L(f"""v_bfe_u32 v{v}, v0, 1, 3
v_lshlrev_b32 v{v}, 10, v{v}
v_lshrrev_b32 v{t}, 4, v0
v_lshl_add_u32 v{v}, v{t}, 5, v{v}
v_and_b32 v{t}, 1, v0
v_lshl_add_u32 v{v}, v{t}, 4, v{v}""") + self.abl(v)
        for kb in kbs:
            for dh in range(2):
                o += [f"s_add_u32 m0, {lbase}, {(kb*2+dh)*1024}", f"s_add_u32 {sB1}, {sBc}, {kb*8192+dh*128}",
                      f"buffer_load_dwordx4 v{v}, {CKV}, {sB1} offen {self.pol} lds #ckv"]
        return o
    def load_wuk(self, v):
        o = L(f"""v_and_b32 v{v}, 15, v0
v_lshlrev_b32 v{v}, 13, v{v}
v_lshrrev_b32 v{v+1}, 4, v0
v_lshl_add_u32 v{v}, v{v+1}, 4, v{v}
s_lshl_b32 {sB0}, {sJ}, 2
s_add_u32 {sB0}, {sB0}, {sW}
s_lshl_b32 {sB0}, {sB0}, 17
s_lshl_b32 {sB1}, {sH}, 8
s_add_u32 {sB0}, {sB0}, {sB1}""") + self.abl(v)
        for s in range(4):
            o.append(f"buffer_load_dwordx4 {vr(60+4*s,4)}, v{v}, {WUK}, {sB0} offen offset:{s*64} {self.pol} #wuk")
        return o
    def touch(self, what, v, n56):
        srd, nl, off = dict(wqa=(WQA,4608,0), wqb=(WQB,4608,0), wuk=(WUK,4096,0), wuv=(WUV,4096,0), wo=(WO,4608,0), wob=(WOB,4608,0),
                            ckv=(CKV,8192,0), pa=(WS,4096,PA0))[what.rstrip("01")]
        lo, n = 0, nl
        if what[-1] in "01": n = nl // 2; lo = n * int(what[-1])
        nw = 56 if n56 else 128
        per = -(-n // nw)
        ni = -(-per // 64); lanes = -(-per // ni)
        o = [f"s_sub_u32 {sB0}, {sR}, 18" if n56 else f"s_mov_b32 {sB0}, {sR}",
             f"s_lshl_b32 {sB0}, {sB0}, 2", f"s_add_u32 {sB0}, {sB0}, {sW}", f"s_mul_i32 {sB0}, {sB0}, {lanes*ni}"]
        for k in range(ni):
            o += [f"v_min_u32 v{v}, {lanes-1}, v0", f"v_add_u32 v{v}, {sB0}, v{v}"]
            if k*lanes + lo: o.append(f"v_add_u32 v{v}, {k*lanes + lo}, v{v}")
            o.append(f"v_min_u32 v{v}, {lo+n-1}, v{v}")
            if srd in (WO, WOB, CKV, WS):
                o += [f"v_lshlrev_b32 v{v}, 7, v{v}", f"s_mul_i32 {sB1}, {sX}, {nl*128}"]
                if off: o.append(f"s_add_u32 {sB1}, {sB1}, {off}")
            else:
                o += [f"v_lshrrev_b32 v{v+1}, 3, v{v}", f"v_and_b32 v{v}, 7, v{v}", f"v_lshlrev_b32 v{v}, 7, v{v}",
                      f"v_lshl_add_u32 v{v}, v{v+1}, 13, v{v}", f"s_lshl_b32 {sB1}, {sX}, 10"]
            if srd != WS: o += self.abl(v, what == "wqa")
            if self.cfg["t2"]: o.append(f"buffer_load_dword {self.sink}, v{v}, {srd}, {sB1} offen nt #touch")
            o.append(f"buffer_load_dword {self.sink}, v{v}, {srd}, {sB1} offen sc1 #touch")
        return o
    def bg(self, hook, v, cbase=None):
        o = []
        for act in [x for x in self.cfg.get("h_" + hook, "").split(".") if x]:
            self.pol = ""
            if act.endswith("!"): self.pol = "nt"; act = act[:-1]
            if act == "wo": o += self.dma_wo(WO, v)
            elif act == "wob": o += self.dma_wo(WOB, v)
            elif act == "wqa": o += self.dma_wq(WQA, v)
            elif act == "wqb": o += self.dma_wq(WQB, v)
            elif act == "wuv": o += self.dma_wuv(v)
            elif act == "wuk": o += self.load_wuk(v)
            elif act == "ckv": o += self.dma_ckv(v, cbase, range(8))
            elif act == "ckva": o += self.dma_ckv(v, cbase, range(3))
            elif act == "ckvb": o += self.dma_ckv(v, cbase, range(3, 8))
            elif act == "cpa": o += self.clr_pa(v)
            elif act.startswith("t56"): o += self.touch(act[3:], v, True)
            elif act.startswith("t"): o += self.touch(act[1:], v, False)
            else: raise ValueError(act)
        return o
    def tr_w(self, dst, nsteps, coff):
        return [f"ds_read_b64_tr_b16 {vr(dst+(s*2+t)*4+hh*2, 2)}, v2 offset:{coff+(s*2+hh)*1024+t*512}"
                for s in range(nsteps) for t in range(2) for hh in range(2)]

    def clr_small(self, v):
        a = v + 4
        o = L(f"""v_mov_b32 v{v}, -1
v_mov_b32 v{v+1}, -1
v_mov_b32 v{v+2}, -1
v_mov_b32 v{v+3}, -1
v_lshlrev_b32 v{a}, 4, v0
v_mov_b32 v{a+1}, {OOB}
v_cmp_gt_u32 vcc, 16, v0
v_cndmask_b32 v{a}, v{a+1}, v{a}, vcc
s_lshl_b32 {sB0}, {sJ}, 2
s_add_u32 {sB0}, {sB0}, {sW}
s_lshl_b32 {sB1}, {sB0}, 8
v_add_u32 v{a}, {sB1}, v{a}
v_cmp_gt_u32 vcc, {QP_H}, v{a}
v_cndmask_b32 v{a}, v{a+1}, v{a}, vcc
s_mul_i32 {sB2}, {sH}, {QP_H}""")
        for Lr in (1, 2, 3):
            o += [f"s_add_u32 {sB1}, {sB2}, {QP0 + Lr*QP_L}",
                  f"buffer_store_dwordx4 {vr(v,4)}, v{a}, {WS}, {sB1} offen {self.ist} #clr",
                  f"buffer_load_dword {self.sink}, v{a}, {WS}, {sB1} offen sc1"]
        o += L(f"""v_lshlrev_b32 v{a}, 4, v0
v_cmp_gt_u32 vcc, 8, v0
v_cndmask_b32 v{a}, v{a+1}, v{a}, vcc
s_lshl_b32 {sB1}, {sB0}, 7
s_cmp_lt_u32 {sB0}, 17
s_cselect_b32 {sB1}, {sB1}, {OOB}
v_add_u32 v{a}, {sB1}, v{a}
s_mul_i32 {sB2}, {sH}, {OP_H}""")
        for Lr in (0, 1, 2, 3):
            o.append(f"s_add_u32 {sB1}, {sB2}, {OPo(Lr)}")
            if Lr: o.append(f"buffer_store_dwordx4 {vr(v,4)}, v{a}, {WS}, {sB1} offen {self.ist} #clr")
            o.append(f"buffer_load_dword {self.sink}, v{a}, {WS}, {sB1} offen sc1")
        o += L(f"""s_lshl_b32 {sB1}, {sX}, 5
s_add_u32 {sB1}, {sB1}, {sR}
s_lshl_b32 {sB1}, {sB1}, 7
s_add_u32 {sB1}, {sB1}, {MLA0}
v_mov_b32 v{a}, {sW0}
buffer_load_dword {self.sink}, v{a}, {WS}, {sB1} offen sc1""")
        return o
    def pa_base(self, sreg):
        return L(f"""s_lshl_b32 {sreg}, {sX}, 1
s_add_u32 {sreg}, {sreg}, {sHG}
s_lshl_b32 {sreg}, {sreg}, 4
s_add_u32 {sreg}, {sreg}, {sKC}
s_lshl_b32 {sreg}, {sreg}, 2
s_add_u32 {sreg}, {sreg}, {sW}
s_lshl_b32 {sreg}, {sreg}, 12
s_add_u32 {sreg}, {sreg}, {PA0}""")
    def clr_pa(self, v):
        a = v + 4
        o = L(f"""v_mov_b32 v{v}, -1
v_mov_b32 v{v+1}, -1
v_mov_b32 v{v+2}, -1
v_mov_b32 v{v+3}, -1
v_lshlrev_b32 v{a}, 4, v0""") + self.pa_base(sB0)
        for t in range(4):
            o.append(f"buffer_store_dwordx4 {vr(v,4)}, v{a}, {WS}, {sB0} offen offset:{t*1024} {self.ist} #clr")
        o += L(f"""v_mov_b32 v{a+1}, {OOB}
v_cmp_gt_u32 vcc, 8, v0
v_cndmask_b32 v{a}, v{a+1}, v{a}, vcc
v_add_u32 v{a}, {sW0}, v{a}
s_lshl_b32 {sB0}, {sX}, 1
s_add_u32 {sB0}, {sB0}, {sHG}
s_lshl_b32 {sB0}, {sB0}, 4
s_add_u32 {sB0}, {sB0}, {sKC}
s_lshl_b32 {sB0}, {sB0}, 7
s_add_u32 {sB0}, {sB0}, {MLA0}
buffer_store_dwordx4 {vr(v,4)}, v{a}, {WS}, {sB0} offen {self.ist} #clr""")
        return o

    def qproj_core(self):
        d = 8; g = 32; wq = 36
        o = [f"{MF} {vr(g,4)}, v[4:7], v[4:7], 0"]
        for s in range(3):
            for t in range(2):
                o.append(f"{MF} {vr(d+(s*2+t)*4,4)}, v[4:7], {vr(wq+(s*2+t)*4,4)}, 0")
        D = lambda s, t, i: d + (s*2+t)*4 + i
        o += [f"v_add_f32_dpp v{g}, v{g+1}, v{g} quad_perm:[1,1,1,1] {DP}",
              f"v_add_f32_dpp v{g+1}, v{g+3}, v{g+3} quad_perm:[1,1,1,1] {DP}",
              f"v_add_f32 v{d}, v{D(0,0,0)}, v{D(1,0,1)}", f"v_add_f32 v{d+2}, v{D(0,0,3)}, v{D(1,0,3)}",
              f"v_add_f32 v{d+1}, v{D(0,1,0)}, v{D(1,1,1)}", f"v_add_f32 v{d+3}, v{D(0,1,3)}, v{D(1,1,3)}",
              f"v_add_f32_dpp v{g}, v{g+2}, v{g} quad_perm:[2,2,2,2] {DP}",
              f"v_add_f32_dpp v{g+1}, v{g+3}, v{g+1} quad_perm:[2,2,2,2] {DP}",
              f"v_add_f32 v{d}, v{d}, v{D(2,0,2)}", f"v_add_f32 v{d+2}, v{d+2}, v{D(2,0,3)}",
              f"v_add_f32 v{d+1}, v{d+1}, v{D(2,1,2)}", f"v_add_f32 v{d+3}, v{d+3}, v{D(2,1,3)}"]
        return o
    def qp_addr(self, Lr):
        return L(f"""v_lshlrev_b32 v77, 4, v0
v_mov_b32 v78, {OOB}
v_cmp_gt_u32 vcc, 16, v0
v_cndmask_b32 v77, v78, v77, vcc
s_lshl_b32 {sT0}, {sJ}, 10
s_lshl_b32 {sT1}, {sW}, 8
s_add_u32 {sT0}, {sT0}, {sT1}
s_add_u32 {sT0}, {sT0}, {sOffQ}
v_add_u32 v77, {sT0}, v77
s_lshl_b32 {sT0}, {sJ}, 3
s_add_u32 {sT0}, {sT0}, 6144
s_add_u32 {sT0}, {sT0}, {sOffQ}
s_add_u32 {sT0}, {sT0}, {sW0}
v_writelane_b32 v78, {sT0}, 0
s_mul_i32 {sT3}, {sH}, {QP_H}
s_add_u32 {sT3}, {sT3}, {QP0 + Lr*QP_L}""")
    def qp_store(self):
        self.e(f"""buffer_store_dwordx4 v[8:11], v77, {WS}, {sT3} offen {self.ist}
buffer_store_dwordx2 v[32:33], v78, {WS}, {sT3} offen {self.ist}""")

    def y_gather(self, Lr, during, dkey):
        self.e(f"""v_and_b32 v76, 3, v0
v_cmp_eq_u32 vcc, 3, v76
v_cndmask_b32 v76, v76, 0, vcc
v_lshlrev_b32 v76, 7, v76
v_lshrrev_b32 v79, 4, v0
v_lshl_add_u32 v76, v79, 5, v76
v_bfe_u32 v79, v0, 2, 2
v_mul_u32_u24 v79, {2*2304}, v79
v_add3_u32 v76, v79, v76, {sOffQ}
s_mul_i32 {sP0}, {sJ}, 384
s_add_u32 {sP0}, {sP0}, {Y0 + Lr*Y_L}
s_mov_b32 {sCNT}, 0""")
        self.delay(dkey)
        loads = L(f"""buffer_load_dwordx4 v[16:19], v76, {WS}, {sP0} offen sc1
buffer_load_dwordx4 v[20:23], v76, {WS}, {sP0} offen offset:16 sc1
buffer_load_dwordx4 v[24:27], v76, {WS}, {sP0} offen offset:2304 sc1
buffer_load_dwordx4 v[28:31], v76, {WS}, {sP0} offen offset:2320 sc1""")
        self.e(loads)
        for i in range(4):
            self.e(f"v_lshlrev_b32 v{8+2*i}, 16, v{4+i}\nv_and_b32 v{9+2*i}, 0xffff0000, v{4+i}")
        self.e(during)
        back = self.lab("yw")
        self.e(f"s_waitcnt vmcnt(0)\n{back}:")
        self.stamp("y_got")
        for i in range(4):
            self.e(f"v_pk_add_f32 {vr(16+2*i,2)}, {vr(16+2*i,2)}, {vr(24+2*i,2)}")
        self.e("""v_pk_add_f32 v[24:25], v[16:17], v[18:19]
v_pk_add_f32 v[26:27], v[20:21], v[22:23]""")
        for i in range(8):
            self.e(f"v_add_f32_dpp v{16+i}, v{16+i}, v{16+i} row_ror:4 {DP}")
            if i == 0: self.e("v_pk_add_f32 v[24:25], v[24:25], v[26:27]")
            if i == 1: self.e("v_cmp_u_f32 vcc, v24, v25")
            if i == 2: self.retry(loads, back)
        for i in range(8):
            self.e(f"v_add_f32_dpp v{16+i}, v{16+i}, v{16+i} row_ror:8 {DP}")
        self.e("s_mov_b32 exec_lo, 0x77777777\ns_mov_b32 exec_hi, 0x77777777")
        for i in range(4):
            self.e(f"v_pk_add_f32 {vr(16+2*i,2)}, {vr(16+2*i,2)}, {vr(8+2*i,2)}")
        for i in range(4):
            self.e(f"v_cvt_pk_bf16_f32 v{4+i}, v{16+2*i}, v{17+2*i}")
        self.e("s_mov_b64 exec, -1")
    def qproj_phase(self, Lr):
        during = self.qp_addr(Lr) + ["@wait cwq"] + self.tr_w(36, 3, C_WQ)
        self.y_gather(Lr - 1, during, "d_y")
        self.e("s_waitcnt lgkmcnt(0)")
        self.e(self.qproj_core())
        self.qp_store()
        self.stamp("qp_pub")

    def q_prep(self, Lr):
        return L(f"""v_lshlrev_b32 v76, 4, v0
v_mov_b32 v77, 0
s_mul_i32 {sP0}, {sH}, {QP_H}
s_add_u32 {sP0}, {sP0}, {QP0 + Lr*QP_L}
s_add_u32 {sP1}, {sP0}, 4096
s_mov_b32 {sCNT}, 0""")
    def q_prep2(self):
        return L(f"""v_lshrrev_b32 v78, 4, v0
v_and_b32 v79, 15, v0
v_lshlrev_b32 v79, 1, v79
v_lshl_add_u32 v78, v78, 6, v79
v_add_u32 v78, {sLS}, v78""")
    def q_loads(self, b):
        o = []
        for i in range(3):
            o.append(f"buffer_load_dwordx4 {vr(b+24+4*i,4)}, v77, {WS}, {sP1} offen offset:{2048+16*i} sc1 #q")
        for u in range(6):
            so, im = (sP0, u*1024) if u < 4 else (sP1, (u-4)*1024)
            o.append(f"buffer_load_dwordx4 {vr(b+4*u,4)}, v76, {WS}, {so} offen offset:{im} sc1 #q")
        return o
    def q_reduce(self, b, loads, back):
        st = b + 24
        pk = lambda x, y: f"v_pk_add_f32 {vr(x,2)}, {vr(x,2)}, {vr(y,2)}"
        o = [pk(st, st+2), pk(st+4, st+6), pk(st+8, st+10)]
        for u in (0, 2, 4):
            for k in (0, 2): o.append(pk(b+4*u+k, b+4*u+4+k))
        o += [pk(st, st+4), pk(b, b+8), pk(b+2, b+10), pk(st, st+8), pk(b+2, b+18), pk(b, b+16)]
        o += [f"v_mul_f32 v{st+1}, {f2u(1/576)}, v{st+1}",
              f"v_fma_f32 v{b}, -v{st+1}, v{b+2}, v{b}",
              f"v_fma_f32 v{b+1}, -v{st+1}, v{b+3}, v{b+1}",
              f"v_cvt_pk_bf16_f32 v{b+3}, v{b}, v{b+1}",
              f"v_add_f32 v{b+2}, v{b+1}, v{st}",
              f"ds_write_b16 v78, v{b+3}",
              f"ds_write_b16_d16_hi v78, v{b+3} offset:32",
              f"v_cmp_u_f32 vcc, v{b}, v{b+2}"]
        self.e(o)
        self.retry(loads, back)
        return L(f"""v_mul_f32 v{st}, {f2u(1/576)}, v{st}
v_fma_f32 v{st}, -v{st+1}, v{st+1}, v{st}
v_max_f32 v{st}, 0, v{st}
v_add_f32 v{st}, {f2u(1e-5)}, v{st}
v_rsq_f32 v{st}, v{st}
v_mul_f32 v{st}, {f2u(SCALE)}, v{st}
v_readfirstlane_b32 {sC}, v{st}""")

    def qk_addr(self):
        return L(f"""v_and_b32 v79, 1, v0
v_lshlrev_b32 v79, 6, v79
v_lshrrev_b32 v75, 4, v0
v_lshl_add_u32 v79, v75, 4, v79
v_add_u32 v79, {sLS}, v79""")
    def qk(self, rs, side=None, side2=None):
        self.e("ds_read_b128 v[8:11], v79\nds_read_b128 v[12:15], v79 offset:128")
        self.e(rs)
        self.e("s_waitcnt lgkmcnt(0)")
        main = []
        def ext(t):
            b, rho = t >> 2, t & 3
            acc = 16 + (t & 3) * 4
            if b & 1 == 0:
                return f"v_add_f32_dpp v{32+rho}, v{acc+1}, v{acc} row_ror:8 row_mask:{1<<(b>>1):#x} bank_mask:0x3"
            return f"v_add_f32_dpp v{32+rho}, v{acc}, v{acc+1} row_ror:8 row_mask:{1<<(b>>1):#x} bank_mask:0xc"
        side = list(side or []); side2 = list(side2 or [])
        for t in range(32):
            acc = 16 + (t & 3) * 4
            main.append(f"{MF} {vr(acc,4)}, v[8:11], {ar(t*8,4)}, 0")
            if t >= 3: main.append(ext(t - 3))
            for _ in range(2):
                if side2: main.append(side2.pop(0))
            main.append(f"{MF} {vr(acc,4)}, v[12:15], {ar(t*8+4,4)}, {vr(acc,4)}")
            if t >= 2:
                for _ in range(2):
                    if side: main.append(side.pop(0))
        main += side2 + [ext(29), ext(30), ext(31)] + side
        self.e(main)
    def softmax(self):
        self.e(f"""v_max3_f32 v36, v32, v33, v34
v_max_f32 v36, v36, v35
v_mul_f32 v32, {sC}, v32
v_mul_f32 v33, {sC}, v33
v_max_f32_dpp v36, v36, v36 quad_perm:[1,0,3,2] {DP}
v_mul_f32 v34, {sC}, v34
v_mul_f32 v35, {sC}, v35
v_max_f32_dpp v36, v36, v36 quad_perm:[2,3,0,1] {DP}
v_lshl_add_u32 v79, v0, 3, {sLS}
v_lshrrev_b32 v78, 4, v0
v_max_f32_dpp v36, v36, v36 row_half_mirror {DP}
v_lshl_add_u32 v78, v78, 4, {sLS}
v_max_f32_dpp v36, v36, v36 row_mirror {DP}
v_max_f32_dpp v36, v36, v36 row_bcast:15 row_mask:0xa bank_mask:0xf
v_max_f32_dpp v36, v36, v36 row_bcast:31 row_mask:0xc bank_mask:0xf
v_mul_f32 v36, {sC}, v36
v_readlane_b32 {sM}, v36, 63
v_subrev_f32 v32, {sM}, v32
v_subrev_f32 v33, {sM}, v33
v_subrev_f32 v34, {sM}, v34
v_subrev_f32 v35, {sM}, v35
v_exp_f32 v32, v32
v_exp_f32 v33, v33
v_exp_f32 v34, v34
v_exp_f32 v35, v35
v_cvt_pk_bf16_f32 v36, v32, v33
v_cvt_pk_bf16_f32 v37, v34, v35
ds_write_b64 v79, v[36:37] offset:512""")
    def lsum(self):
        return L(f"""v_add_f32 v32, v32, v33
v_add_f32 v34, v34, v35
v_add_f32 v33, v32, v34
v_mov_b32 v32, {sM}
s_lshl_b32 {sT0}, {sW}, 3
v_add_f32_dpp v33, v33, v33 quad_perm:[1,0,3,2] {DP}
s_add_u32 {sT0}, {sT0}, {LS+3840}
v_mov_b32 v34, {sT0}
v_add_f32_dpp v33, v33, v33 quad_perm:[2,3,0,1] {DP}
v_add_f32_dpp v33, v33, v33 row_half_mirror {DP}
v_add_f32_dpp v33, v33, v33 row_mirror {DP}
v_add_f32_dpp v33, v33, v33 row_bcast:15 row_mask:0xa bank_mask:0xf
v_add_f32_dpp v33, v33, v33 row_bcast:31 row_mask:0xc bank_mask:0xf
v_readlane_b32 {sT1}, v33, 63
v_mov_b32 v33, {sT1}
ds_write_b64 v34, v[32:33]""")
    def mlcomb(self, Lr):
        return L(f"""v_mov_b32 v34, {LS+3840}
ds_read_b128 v[8:11], v34
ds_read_b128 v[12:15], v34 offset:16
v_lshlrev_b32 v38, 2, v0
s_lshl_b32 {sT0}, {sJ}, 8
s_add_u32 {sT0}, {sT0}, {sW0}
v_add_u32 v38, {sT0}, v38
s_lshl_b32 {sT0}, {sJ}, 3
s_add_u32 {sT0}, {sT0}, 2048
s_add_u32 {sT0}, {sT0}, {sW0}
v_mov_b32 v39, {OOB}
v_writelane_b32 v39, {sT0}, 0
s_mul_i32 {sT3}, {sH}, {OP_H}
s_add_u32 {sT3}, {sT3}, {OPo(Lr)}
v_and_b32 v34, 15, v0
v_lshrrev_b32 v35, 4, v0
s_waitcnt lgkmcnt(0)
v_max3_f32 v36, v8, v10, v12
v_max_f32 v36, v36, v14
v_sub_f32 v8, v8, v36
v_sub_f32 v10, v10, v36
v_sub_f32 v12, v12, v36
v_sub_f32 v14, v14, v36
v_exp_f32 v8, v8
v_exp_f32 v10, v10
v_exp_f32 v12, v12
v_exp_f32 v14, v14
v_mul_f32 v37, v8, v9
v_fmac_f32 v37, v10, v11
v_fmac_f32 v37, v12, v13
v_fmac_f32 v37, v14, v15
v_mul_u32_u24 v35, 576, v35
v_lshl_add_u32 v34, v34, 2, v35
s_add_u32 {sT0}, {sLS}, 1024
v_add_u32 v34, {sT0}, v34
v_lshlrev_b32 v35, 3, v0
v_add_u32 v35, {LS+1024}, v35""")
    def o_finish(self):
        for T in range(0, 8, 2):
            self.e(f"ds_write2_b32 v34, v{40+4*T}, v{44+4*T} offset0:{T*16} offset1:{T*16+16}")
        self.wait("clr")
        self.e(f"""s_waitcnt lgkmcnt(0)
s_barrier
ds_read_b64 v[16:17], v35
ds_read_b64 v[18:19], v35 offset:4096
ds_read_b64 v[20:21], v35 offset:8192
ds_read_b64 v[22:23], v35 offset:12288
buffer_store_dwordx2 v[36:37], v39, {WS}, {sT3} offen {self.ist}
s_waitcnt lgkmcnt(3)
v_pk_mul_f32 v[16:17], v[16:17], v[8:9] op_sel_hi:[1,0]
s_waitcnt lgkmcnt(2)
v_pk_fma_f32 v[16:17], v[18:19], v[10:11], v[16:17] op_sel_hi:[1,0,1]
s_waitcnt lgkmcnt(1)
v_pk_fma_f32 v[16:17], v[20:21], v[12:13], v[16:17] op_sel_hi:[1,0,1]
s_waitcnt lgkmcnt(0)
v_pk_fma_f32 v[16:17], v[22:23], v[14:15], v[16:17] op_sel_hi:[1,0,1]
v_cvt_pk_bf16_f32 v24, v16, v17
buffer_store_dword v24, v38, {WS}, {sT3} offen {self.ist}""")
        self.stamp("op_pub")

    def mlweights(self, m, wdst):
        t = m + 2
        o = [f"v_max_f32_dpp v{t}, v{m}, v{m} row_ror:1 {DP}", f"v_max_f32_dpp v{t}, v{t}, v{t} row_ror:2 {DP}",
             f"v_max_f32_dpp v{t}, v{t}, v{t} row_ror:4 {DP}", f"v_sub_f32 v{t}, v{m}, v{t}", f"v_exp_f32 v{t}, v{t}",
             f"v_mul_f32 v{t+1}, v{t}, v{m+1}", f"v_add_f32_dpp v{t+1}, v{t+1}, v{t+1} row_ror:1 {DP}",
             f"v_add_f32_dpp v{t+1}, v{t+1}, v{t+1} row_ror:2 {DP}", f"v_add_f32_dpp v{t+1}, v{t+1}, v{t+1} row_ror:4 {DP}",
             f"v_rcp_f32 v{t+1}, v{t+1}", f"v_mul_f32 v{t}, v{t}, v{t+1}"]
        return o + [f"v_mov_b32_dpp v{wdst+i}, v{t} row_newbcast:{i} {DP}" for i in range(4)]
    def rowsum(self, acc, w, t):
        o = []
        if w is not None:
            o += [f"v_pk_mul_f32 {vr(acc+4*k,2)}, {vr(acc+4*k,2)}, {vr(w,2)}" for k in range(2)]
            o += [f"v_pk_fma_f32 {vr(acc+4*k,2)}, {vr(acc+4*k+2,2)}, {vr(w+2,2)}, {vr(acc+4*k,2)}" for k in range(2)]
        else:
            o += [f"v_pk_add_f32 {vr(acc+4*k,2)}, {vr(acc+4*k,2)}, {vr(acc+4*k+2,2)}" for k in range(2)]
        return o + [f"v_add_f32 v{t}, v{acc}, v{acc+1}", f"v_add_f32 v{t+1}, v{acc+4}, v{acc+5}",
                    f"v_permlane16_swap_b32 v{t}, v{t+1}", f"v_add_f32 v{t}, v{t}, v{t+1}"]

    def op_prep(self, Lr):
        return L(f"""v_and_b32 v76, 7, v0
v_lshlrev_b32 v76, 8, v76
v_lshrrev_b32 v77, 4, v0
v_lshl_add_u32 v76, v77, 4, v76
v_and_b32 v77, 1, v77
v_lshl_add_u32 v77, v77, 2, v0
v_and_b32 v77, 7, v77
v_lshlrev_b32 v77, 3, v77
s_lshl_b32 {sP0}, {sX}, 2
s_add_u32 {sP0}, {sP0}, {sW}
s_mul_i32 {sP0}, {sP0}, {OP_H}
s_add_u32 {sP0}, {sP0}, {OPo(Lr)}
s_mov_b32 {sCNT}, 0""")
    def oproj(self, Lr, weighted):
        idle = self.lab("idle"); join = self.lab("join")
        self.e(f"s_cmp_ge_u32 {sR}, 18\ns_cbranch_scc1 {idle}")
        n0 = self.nst
        self.e(self.op_prep(Lr))
        self.delay("d_h1")
        loads = [f"buffer_load_dwordx2 v[32:33], v77, {WS}, {sP0} offen offset:2048 sc1"] if weighted else []
        loads += [f"buffer_load_dwordx4 {vr(8+4*s,4)}, v76, {WS}, {sP0} offen offset:{s*64} sc1" for s in range(4)]
        self.e(loads)
        self.wait("cwo")
        self.e(self.tr_w(40, 4, C_WO))
        self.e(f"""s_add_u32 {sT0}, {sLS}, 3584
v_lshl_add_u32 v78, v0, 2, {sT0}
v_and_b32 v79, 7, v0
v_lshlrev_b32 v79, 4, v79
v_add_u32 v79, {LS+3584}, v79
v_lshlrev_b32 v75, 4, v0
v_mov_b32 v74, {OOB}
v_cmp_gt_u32 vcc, 8, v0
v_cndmask_b32 v75, v74, v75, vcc
v_add_u32 v75, {sW0}, v75
s_mul_i32 {sT3}, {sX}, 2304
s_lshl_b32 {sT0}, {sR}, 7
s_add_u32 {sT3}, {sT3}, {sT0}
s_add_u32 {sT3}, {sT3}, {Y0 + Lr*Y_L}""")
        back = self.lab("ow")
        self.e(f"s_waitcnt vmcnt(0) lgkmcnt(0)\n{back}:")
        self.stamp("op_got")
        mf = [f"{MF} {vr(24+4*t,4)}, {vr(8+4*s,4)}, {vr(40+(s*2+t)*4,4)}, {vr(24+4*t,4) if s else 0}" for s in range(4) for t in range(2)]
        self.e(merge(mf, self.mlweights(32, 36) if weighted else [], per=2))
        self.e(self.rowsum(24, 36 if weighted else None, 34))
        self.e("ds_write_b32 v78, v34\nv_cmp_u_f32 vcc, v34, v34")
        self.retry(loads, back)
        self.e(f"""s_waitcnt lgkmcnt(0)
s_barrier
ds_read_b128 v[8:11], v79
ds_read_b128 v[12:15], v79 offset:4096
ds_read_b128 v[16:19], v79 offset:8192
ds_read_b128 v[20:23], v79 offset:12288
s_waitcnt lgkmcnt(2)
v_pk_add_f32 v[8:9], v[8:9], v[12:13]
v_pk_add_f32 v[10:11], v[10:11], v[14:15]
s_waitcnt lgkmcnt(0)
v_pk_add_f32 v[16:17], v[16:17], v[20:21]
v_pk_add_f32 v[18:19], v[18:19], v[22:23]
v_pk_add_f32 v[32:33], v[8:9], v[16:17]
v_pk_add_f32 v[34:35], v[10:11], v[18:19]
buffer_store_dwordx4 v[32:35], v75, {WS}, {sT3} offen sc1""")
        self.stamp("y_pub")
        self.e(f"{join}:")
        a0, vm0, n1, sn = self.a, list(self.vm), self.nst, list(self.snames)
        self.a = Asm(); self.nst = n0
        self.e(f"{idle}:")
        self.vm = []
        if Lr < 3: self.e(self.bg(f"idle{Lr}", 40))
        self.e(f"s_waitcnt vmcnt({len(self.vm)})")
        self.stamp("op_got")
        self.delay("d_yi")
        self.stamp("y_pub")
        self.e(f"s_branch {join}")
        self.stubs.append(self.a.lines)
        self.a, self.vm, self.nst, self.snames = a0, vm0, n1, sn

    def mla(self, Lr, cbase):
        i = Lr >> 1
        self.qproj_phase(Lr)
        self.e(self.q_prep(Lr))
        self.delay("d_q")
        loads = self.q_loads(12)
        self.e(loads)
        self.e(self.q_prep2())
        self.e(f"""v_lshrrev_b32 v79, 4, v0
v_lshl_add_u32 v56, v79, 4, {sLS}
v_lshlrev_b32 v79, 3, v79
v_mov_b32 v57, {OOB}
v_and_b32 v58, 15, v0
v_cmp_eq_u32 vcc, 0, v58
v_cndmask_b32 v57, v57, v79, vcc
s_lshl_b32 {sT3}, {sH}, 10
s_lshl_b32 {sT0}, {sJ}, 7
s_add_u32 {sT3}, {sT3}, {sT0}
s_lshl_b32 {sT0}, {sW}, 5
s_add_u32 {sT3}, {sT3}, {sT0}
s_add_u32 {sT3}, {sT3}, {QA0 + i*QA_L}""")
        back = self.lab("qw")
        self.e(f"s_waitcnt vmcnt(0)\n{back}:")
        self.stamp("q_got")
        rs = self.q_reduce(12, loads, back)
        for s in range(4):
            self.e(f"ds_read_b128 {vr(16+4*s,4)}, v56 offset:{s*64}")
        self.e(rs)
        for s in range(4):
            self.e(f"s_waitcnt lgkmcnt({3-s})")
            self.e(f"{MF} v[8:11], {vr(60+4*s,4)}, {vr(16+4*s,4)}, {'v[8:11]' if s else 0}")
        self.e(f"""v_mul_f32 v8, {sC}, v8
v_mul_f32 v9, {sC}, v9
v_mul_f32 v10, {sC}, v10
v_mul_f32 v11, {sC}, v11
v_cvt_pk_bf16_f32 v78, v8, v9
v_cvt_pk_bf16_f32 v79, v10, v11
buffer_store_dwordx2 v[78:79], v57, {WS}, {sT3} offen sc1""")
        self.stamp("qa_pub")
        self.e(self.bg(f"qa{Lr}", 24, cbase))
        self.e(f"""v_and_b32 v76, 15, v0
v_lshrrev_b32 v77, 4, v0
v_lshlrev_b32 v72, 11, v76
v_lshl_add_u32 v72, v77, 4, v72
s_lshl_b32 {sP0}, {sHG}, 10
s_lshl_b32 {sT0}, {sW}, 8
s_add_u32 {sP0}, {sP0}, {sT0}
s_add_u32 {sP0}, {sP0}, {QA0 + i*QA_L}
s_mov_b32 {sCNT}, 0""")
        self.delay("d_qa")
        loads = [f"buffer_load_dwordx4 {vr(8+4*s,4)}, v72, {WS}, {sP0} offen offset:{s*64} sc1" for s in range(4)]
        self.e(loads)
        self.e(f"""v_lshrrev_b32 v73, 3, v76
v_lshlrev_b32 v73, 11, v73
v_and_b32 v76, 7, v76
v_lshl_add_u32 v73, v76, 5, v73
v_lshrrev_b32 v76, 1, v77
v_lshl_add_u32 v73, v76, 8, v73
v_and_b32 v76, 1, v77
v_lshl_add_u32 v73, v76, 4, v73
v_add_u32 v73, {cbase}, v73
v_lshl_add_u32 v74, v0, 4, {sLS}
v_xor_b32 v75, 0x1000, v74
v_xor_b32 v76, 0x2000, v74
v_xor_b32 v77, 0x3000, v74""")
        self.e(self.pa_base(sP1))
        self.wait("ckv")
        kread = lambda t, sc, dst: f"ds_read_b128 {vr(dst,4)}, v73 offset:{t*4096+(sc>>1)*1024+(sc&1)*512}"
        for t in range(2):
            for sc in range(4): self.e(kread(t, sc, 40 + (t*4+sc)*4))
        back = self.lab("qaw")
        self.e(f"s_waitcnt vmcnt(0) lgkmcnt(0)\n{back}:")
        self.stamp("qa_got")
        mf = lambda t, sc: f"{MF} {vr(24+4*t,4)}, {vr(40+((t&1)*4+sc)*4,4)}, {vr(8+4*sc,4)}, {vr(24+4*t,4) if sc else 0}"
        chk = [f"v_max3_u32 v78, v8, v9, v10"] + [f"v_max3_u32 v78, v{11+2*k}, v{12+2*k}, v78" for k in range(6)] + ["v_max_u32 v78, v23, v78"]
        self.e(merge([mf(0, sc) for sc in range(4)], chk, per=2))
        self.e("v_cmp_eq_u32 vcc, -1, v78")
        self.retry(loads, back)
        for sc in range(4): self.e(kread(2, sc, 40 + sc*4))
        for sc in range(4): self.e(mf(1, sc))
        for sc in range(4): self.e(kread(3, sc, 56 + sc*4))
        self.e("ds_write_b128 v74, v[24:27]")
        for sc in range(4):
            self.e(f"s_waitcnt lgkmcnt({8-sc})")
            self.e(mf(2, sc))
        self.e("ds_write_b128 v74, v[28:31] offset:1024")
        for sc in range(4):
            self.e(f"s_waitcnt lgkmcnt({5-sc})")
            self.e(mf(3, sc))
        self.e(f"""ds_write_b128 v74, v[32:35] offset:2048
v_and_b32 v72, 15, v0
v_lshlrev_b32 v72, 6, v72
v_lshrrev_b32 v73, 4, v0
v_lshl_add_u32 v72, v73, 4, v72
v_and_b32 v73, 31, v0
v_lshrrev_b32 v78, 5, v0
v_lshlrev_b32 v78, 11, v78
ds_write_b128 v74, v[36:39] offset:3072
v_lshl_add_u32 v73, v73, 3, v78
v_add_u32 v73, {cbase}, v73
s_waitcnt lgkmcnt(0)
s_barrier""")
        self.stamp("s_bar")
        for t in range(4):
            self.e(f"""ds_read_b128 {vr(8+4*t,4)}, v75 offset:{t*1024}
ds_read_b128 {vr(40+4*t,4)}, v76 offset:{t*1024}
ds_read_b128 {vr(56+4*t,4)}, v77 offset:{t*1024}""")
        self.e(self.bg(f"p4{Lr}", 74))
        for t in range(4):
            self.e(f"s_waitcnt lgkmcnt({9-3*t})")
            for k in (0, 2):
                self.e(f"v_pk_add_f32 {vr(24+4*t+k,2)}, {vr(24+4*t+k,2)}, {vr(8+4*t+k,2)}")
                self.e(f"v_pk_add_f32 {vr(40+4*t+k,2)}, {vr(40+4*t+k,2)}, {vr(56+4*t+k,2)}")
            for k in (0, 2):
                self.e(f"v_pk_add_f32 {vr(24+4*t+k,2)}, {vr(24+4*t+k,2)}, {vr(40+4*t+k,2)}")
        def tread(q):
            tau, s, b = q >> 2, (q >> 1) & 1, q & 1
            T = 2*tau + b; dst = 40 + (q & 7) * 4
            return [f"ds_read_b64_tr_b16 {vr(dst+2*hh,2)}, v73 offset:{(4*s+2*hh)*2048+(T>>2)*1024+(T&3)*256}" for hh in range(2)]
        pre = sum([tread(q) for q in range(7)], [])
        mx = [f"v_max3_f32 v78, v24, v25, v26"] + [f"v_max3_f32 v78, v{27+2*k}, v{28+2*k}, v78" for k in range(6)] + ["v_max_f32 v78, v39, v78"]
        mx += L("""v_mov_b32 v79, v78
v_permlane16_swap_b32 v78, v79
v_max_f32 v78, v78, v79
v_mov_b32 v79, v78
v_permlane32_swap_b32 v78, v79
v_max_f32 v78, v78, v79
v_ceil_f32 v78, v78""")
        self.e(merge(mx, pre, per=1))
        for k in range(16): self.e(f"v_sub_f32 v{24+k}, v{24+k}, v78")
        for k in range(16): self.e(f"v_exp_f32 v{24+k}, v{24+k}")
        for k in range(8): self.e(f"v_cvt_pk_bf16_f32 v{8+k}, v{24+2*k}, v{25+2*k}")
        for k in range(4): self.e(f"v_pk_add_f32 {vr(16+2*k,2)}, {vr(24+2*k,2)}, {vr(32+2*k,2)}")
        self.stamp("p_done")
        ls = L(f"""v_pk_add_f32 v[16:17], v[16:17], v[20:21]
v_pk_add_f32 v[18:19], v[18:19], v[22:23]
v_pk_add_f32 v[16:17], v[16:17], v[18:19]
v_add_f32 v79, v16, v17
v_mov_b32 v77, v79
v_permlane16_swap_b32 v79, v77
v_add_f32 v79, v79, v77
v_mov_b32 v77, v79
v_permlane32_swap_b32 v79, v77
v_add_f32 v79, v79, v77
v_lshlrev_b32 v77, 7, v0
v_mov_b32 v75, {OOB}
v_cmp_gt_u32 vcc, 16, v0
v_cndmask_b32 v77, v75, v77, vcc
v_add_u32 v77, {sW0}, v77
s_lshl_b32 {sT3}, {sX}, 1
s_add_u32 {sT3}, {sT3}, {sHG}
s_lshl_b32 {sT3}, {sT3}, 8
s_add_u32 {sT3}, {sT3}, {sKC}
s_lshl_b32 {sT3}, {sT3}, 3
s_add_u32 {sT3}, {sT3}, {MLA0}
buffer_store_dwordx2 v[78:79], v77, {WS}, {sT3} offen {self.ist}""")
        def outp(tau):
            acc = 24 + (tau & 1) * 8; o = 16 + (tau & 1) * 4
            return [f"v_cvt_pk_bf16_f32 v{o+k}, v{acc+2*k}, v{acc+2*k+1}" for k in range(4)] + \
                   [f"buffer_store_dwordx4 {vr(o,4)}, v72, {WS}, {sP1} offen offset:{tau*1024} {self.ist}"]
        seq = []
        for q in range(16):
            tau, s, b = q >> 2, (q >> 1) & 1, q & 1
            acc = 24 + (tau & 1) * 8 + b * 4
            issued = min(q + 7, 16)
            seq.append(f"s_waitcnt lgkmcnt({2*(issued-q-1)})")
            seq.append(f"{MF} {vr(acc,4)}, {vr(40+(q&7)*4,4)}, {vr(8+4*s,4)}, {vr(acc,4) if s else 0}")
            if q + 7 < 16: seq += tread(q + 7)
            if q < 6: seq += ls[q*4:(q+1)*4] if q < 5 else ls[20:]
            if q in (6, 10, 14): seq += outp((q >> 2) - 1)
        seq += outp(3)
        self.e(seq)
        self.stamp("pa_pub")
        self.e(f"""v_lshrrev_b32 v77, 4, v0
v_lshlrev_b32 v73, 5, v77
v_lshlrev_b32 v72, 16, v77
v_bfe_u32 v74, v0, 2, 2
v_lshl_add_u32 v72, v74, 10, v72
v_and_b32 v74, 3, v0
v_lshl_add_u32 v72, v74, 4, v72
s_lshl_b32 {sT0}, {sX}, 1
s_add_u32 {sT0}, {sT0}, {sHG}
s_lshl_b32 {sP1}, {sT0}, 4
s_add_u32 {sP1}, {sP1}, {sKC}
s_lshl_b32 {sP1}, {sP1}, 7
s_add_u32 {sP1}, {sP1}, {MLA0}
s_lshl_b32 {sT0}, {sT0}, 18
s_lshl_b32 {sT1}, {sW}, 12
s_add_u32 {sT0}, {sT0}, {sT1}
s_lshl_b32 {sT1}, {sKC}, 6
s_add_u32 {sT0}, {sT0}, {sT1}
s_add_u32 {sQ[0]}, {sT0}, {PA0}
s_add_u32 {sQ[1]}, {sT0}, {PA0+16384}
s_add_u32 {sQ[2]}, {sT0}, {PA0+32768}
s_add_u32 {sQ[3]}, {sT0}, {PA0+49152}
s_mov_b32 {sCNT}, 0""")
        self.delay("d_pa")
        loads = [f"buffer_load_dwordx4 v[40:43], v73, {WS}, {sP1} offen sc1", f"buffer_load_dwordx4 v[44:47], v73, {WS}, {sP1} offen offset:16 sc1"]
        loads += [f"buffer_load_dwordx4 {vr(24+4*k,4)}, v72, {WS}, {sQ[k]} offen sc1" for k in range(4)]
        self.e(loads)
        self.e(f"""v_and_b32 v8, 15, v0
v_and_b32 v78, 1, v8
v_lshlrev_b32 v78, 4, v78
v_mov_b32 v79, 0xffff
v_lshlrev_b32 v78, v78, v79
v_lshrrev_b32 v79, 1, v8""")
        for k in range(4):
            self.e(f"v_cmp_eq_u32 vcc, {k}, v79\nv_cndmask_b32 v{64+k}, 0, v78, vcc")
        self.e(f"""v_lshrrev_b32 v74, 3, v8
v_lshlrev_b32 v74, 10, v74
v_bfe_u32 v78, v8, 2, 1
v_lshl_add_u32 v74, v78, 6, v74
v_lshl_add_u32 v74, v77, 5, v74
v_and_b32 v78, 3, v8
v_lshl_add_u32 v74, v78, 3, v74
v_mov_b32 v75, {OOB}
v_cmp_gt_u32 vcc, 32, v0
v_cndmask_b32 v74, v75, v74, vcc
s_lshl_b32 {sT1}, {sKC}, 1
s_add_u32 {sT1}, {sT1}, {sHG}
s_lshl_b32 {sT3}, {sT1}, 13
s_lshl_b32 {sT0}, {sW}, 11
s_add_u32 {sT3}, {sT3}, {sT0}
s_lshl_b32 {sT0}, {sX}, 7
s_add_u32 {sT3}, {sT3}, {sT0}
s_add_u32 {sT3}, {sT3}, {PB0 + i*PB_L}
s_lshl_b32 {sT2}, {sT1}, 10
s_add_u32 {sT2}, {sT2}, {sT0}
s_add_u32 {sT2}, {sT2}, {MLB0 + i*MLB_L}
v_writelane_b32 v75, {sW0}, 0""")
        back = self.lab("paw")
        self.e(f"""s_waitcnt vmcnt(4)
{back}:
v_max3_f32 v12, v40, v42, v44
v_max_f32 v12, v12, v46
v_mov_b32 v13, v12
v_permlane16_swap_b32 v12, v13
v_max_f32 v12, v12, v13
v_mov_b32 v13, v12
v_permlane32_swap_b32 v12, v13
v_max_f32 v12, v12, v13""")
        for k in range(4): self.e(f"v_sub_f32 v{40+2*k}, v{40+2*k}, v12")
        for k in range(4): self.e(f"v_exp_f32 v{40+2*k}, v{40+2*k}")
        for k in range(4): self.e(f"v_cvt_pk_bf16_f32 v{68+k}, v{40+2*k}, v{40+2*k}")
        for k in range(4):
            for q in range(4): self.e(f"v_and_b32 v{48+4*k+q}, v{68+k}, v{64+q}")
        self.e("s_waitcnt vmcnt(0)")
        self.stamp("pa_got")
        mfs = [f"{MF} v[8:11], {vr(48+4*k,4)}, {vr(24+4*k,4)}, {'v[8:11]' if k else 0}" for k in range(4)]
        lx = L("""v_mul_f32 v13, v40, v41
v_fmac_f32 v13, v42, v43
v_fmac_f32 v13, v44, v45
v_fmac_f32 v13, v46, v47
v_mov_b32 v14, v13
v_permlane16_swap_b32 v13, v14
v_add_f32 v13, v13, v14
v_mov_b32 v14, v13
v_permlane32_swap_b32 v13, v14
v_add_f32 v13, v13, v14""")
        self.e(merge(mfs, lx, per=2))
        self.e("""v_cmp_u_f32 vcc, v8, v13
v_cvt_pk_bf16_f32 v14, v8, v9
v_cvt_pk_bf16_f32 v15, v10, v11""")
        self.retry(loads, back)
        self.e(f"""buffer_store_dwordx2 v[14:15], v74, {WS}, {sT3} offen sc1
buffer_store_dwordx2 v[12:13], v75, {WS}, {sT2} offen sc1""")
        self.stamp("pb_pub")
        self.e(self.bg(f"pb{Lr}", 68))
        self.e(f"""v_and_b32 v76, 7, v0
v_lshlrev_b32 v76, 7, v76
v_lshrrev_b32 v77, 4, v0
v_lshl_add_u32 v76, v77, 4, v76
v_and_b32 v77, 1, v77
v_lshl_add_u32 v77, v77, 2, v0
v_and_b32 v77, 7, v77
v_lshlrev_b32 v77, 7, v77
s_lshl_b32 {sP0}, {sH}, 3
s_add_u32 {sP0}, {sP0}, {sJ}
s_lshl_b32 {sP0}, {sP0}, 10
s_add_u32 {sP0}, {sP0}, {PB0 + i*PB_L}
s_lshl_b32 {sP1}, {sH}, 10
s_add_u32 {sP1}, {sP1}, {MLB0 + i*MLB_L}
s_mov_b32 {sCNT}, 0""")
        self.delay("d_pb")
        loads = L(f"""buffer_load_dwordx2 v[48:49], v77, {WS}, {sP1} offen sc1
buffer_load_dwordx4 v[16:19], v76, {WS}, {sP0} offen sc1
buffer_load_dwordx4 v[20:23], v76, {WS}, {sP0} offen offset:64 sc1""")
        self.e(loads)
        self.e(f"""v_lshlrev_b32 v78, 1, v0
v_and_b32 v79, 33, v0
v_cmp_eq_u32 vcc, 0, v79
v_mov_b32 v79, {OOB}
v_cndmask_b32 v78, v79, v78, vcc
s_mul_i32 {sT3}, {sH}, {OP_H}
s_lshl_b32 {sT0}, {sJ}, 8
s_add_u32 {sT3}, {sT3}, {sT0}
s_lshl_b32 {sT0}, {sW}, 6
s_add_u32 {sT3}, {sT3}, {sT0}
s_add_u32 {sT3}, {sT3}, {OPo(Lr)}""")
        self.wait("cwq")
        self.e(self.tr_w(24, 2, C_WQ))
        back = self.lab("pbw")
        self.e(f"s_waitcnt vmcnt(0) lgkmcnt(0)\n{back}:")
        self.stamp("pb_got")
        mf = [f"{MF} {vr(40+4*t,4)}, {vr(16+4*s,4)}, {vr(24+(s*2+t)*4,4)}, {vr(40+4*t,4) if s else 0}" for s in range(2) for t in range(2)]
        self.e(merge(mf, self.mlweights(48, 52), per=2))
        self.e(self.rowsum(40, 52, 72))
        self.e(f"""v_cmp_u_f32 vcc, v72, v72
v_mov_b32_dpp v73, v72 quad_perm:[1,1,3,3] {DP}
v_cvt_pk_bf16_f32 v73, v72, v73""")
        self.retry(loads, back)
        self.e(f"buffer_store_dword v73, v78, {WS}, {sT3} offen {self.ist}")
        self.stamp("op_pub")
        self.oproj(Lr, False)

    def kload(self, i):
        b, rho, s = i >> 3, (i >> 1) & 3, i & 1
        if i % 8 == 0: self.e(f"s_add_u32 s78, {sKV}, {b*32768}")
        if i % 2 == 0 and i >= self.cfg["kd"]: self.wait(f"k{i - self.cfg['kd'] + 1}")
        self.e(f"buffer_load_dwordx4 {ar(i*4,4)}, v72, {K_}, s78 offen offset:{rho*256+s*128} nt", tag=f"k{i}")
    def slot(self, u): return (u - NRES) % 5
    def vdma(self, u):
        b, dh = u >> 1, u & 1
        for gp in range(2):
            self.e(f"""s_add_u32 m0, {sLV}, {self.slot(u)*4096 + gp*2048}
s_add_u32 s78, {sKV}, {b*32768 + gp*4096 + dh*128}
buffer_load_dwordx4 v73, {V_}, s78 offen nt lds
buffer_load_dwordx4 v73, {V_}, s78 offen offset:1024 nt lds""", tag=f"v{u}")
    def vtr(self, u, dst, acc=False):
        R = ar if acc else vr
        return [f"ds_read_b64_tr_b16 {R(dst+4*T+2*hh,2)}, v3 offset:{self.slot(u)*4096+hh*1024+T*256}" for T in range(4) for hh in range(2)]
    def pvm(self, u, src, preg, first, acc=False):
        R = ar if acc else vr
        dh = u & 1
        return [f"{MF} {vr(40+16*dh+4*T,4)}, {vr(preg,4)}, {R(src+4*T,4)}, {0 if first else vr(40+16*dh+4*T,4)}" for T in range(4)]

    def prologue(self):
        self.mode = "pre"
        ptrs = [(K_, 8, 0x4000000), (WS, 104, 0x10000000), (V_, 16, 0x4000000), (X0, 0, 1152), (WQA, 24, 576*8192), (DBG, 96, 256),
                (WO, 32, 4096*1152), (CKV, 48, 8192*1024), (WQB, 56, 576*8192), (WUK, 64, 512*8192), (WUV, 72, 512*8192),
                (WOB, 80, 4096*1152), (OUT, 88, 1152)]
        base = lambda srd: int(srd[2:srd.index(":")])
        self.e("s_cmp_ge_u32 s2, 256\ns_cbranch_scc0 L_go\nL_abort:\ns_endpgm\nL_go:")
        for srd, off, sz in ptrs:
            self.e(f"s_load_dwordx2 s[{base(srd)}:{base(srd)+1}], s[0:1], {off}")
        self.e(f"""v_lshrrev_b32 v1, 6, v0
v_lshlrev_b32 v12, 4, v0
v_and_b32 v0, 63, v0
v_readfirstlane_b32 {sW}, v1
s_and_b32 {sX}, s2, 7
s_lshr_b32 {sR}, s2, 3
s_lshl_b32 {sKV}, {sX}, 5
s_add_u32 {sKV}, {sKV}, {sR}
s_lshr_b32 {sH}, {sKV}, 3
s_and_b32 {sJ}, {sR}, 7
s_lshl_b32 {sKV}, {sKV}, 18
s_lshl_b32 {sT0}, {sW}, 13
s_add_u32 {sKV}, {sKV}, {sT0}
v_and_b32 v72, 7, v0
v_lshlrev_b32 v72, 10, v72
v_bfe_u32 v73, v0, 3, 1
v_lshl_add_u32 v72, v73, 6, v72
v_lshrrev_b32 v73, 4, v0
v_lshl_add_u32 v72, v73, 4, v72
v_mov_b32 v8, -1
v_mov_b32 v9, -1
v_mov_b32 v10, -1
v_mov_b32 v11, -1
s_lshl_b32 {sT1}, s2, 12""")
        if self.cfg.get("noclr"): self.e(f"v_add_u32 v12, {OOB}, v12")
        for srd, off, sz in ptrs:
            self.e(f"s_mov_b32 s{base(srd)+2}, {sz:#x}\ns_mov_b32 s{base(srd)+3}, 0x20000")
        self.e("s_waitcnt lgkmcnt(0)")
        if self.stamps: self.e("v_mov_b32 v1, 0")
        self.stamp("start")
        self.e(f"buffer_store_dwordx4 v[8:11], v12, {WS}, {sT1} offen sc1", tag="clr0")
        for i in range(8): self.kload(i)
        self.e(f"""s_mul_i32 {sLV}, {sW}, {LV_W}
s_lshl_b32 {sLC}, {sW}, 14
s_add_u32 {sLC}, {sLC}, {LC}
s_lshl_b32 {sLS}, {sW}, 12
s_add_u32 {sLS}, {sLS}, {LS}
s_cmp_lt_u32 {sJ}, 6
s_cselect_b32 {sOffQ}, 0, {OOB}
s_cmp_lt_u32 {sR}, 18
s_cselect_b32 {sOffO}, 0, {OOB}
s_cmp_eq_u32 {sW}, 0
s_cselect_b32 {sW0}, 0, {OOB}
s_bfe_u32 {sHG}, {sR}, 0x10003
s_lshr_b32 {sKC}, {sR}, 4
s_lshl_b32 {sKC}, {sKC}, 3
s_add_u32 {sKC}, {sKC}, {sJ}
s_mul_i32 {sBq}, {sJ}, {96*8192}
s_lshl_b32 {sT1}, {sH}, 8
s_add_u32 {sBq}, {sBq}, {sT1}
s_lshl_b32 {sT1}, {sW}, 6
s_add_u32 {sBq}, {sBq}, {sT1}
s_lshl_b32 {sBo}, {sX}, 2
s_add_u32 {sBo}, {sBo}, {sW}
s_mul_i32 {sBo}, {sBo}, {128*1152}
s_lshl_b32 {sT1}, {sR}, 6
s_add_u32 {sBo}, {sBo}, {sT1}
s_lshl_b32 {sBc}, {sX}, 4
s_add_u32 {sBc}, {sBc}, {sKC}
s_lshl_b32 {sBc}, {sBc}, 16
s_lshl_b32 {sT1}, {sW}, 8
s_add_u32 {sBc}, {sBc}, {sT1}
s_getreg_b32 {sXCC}, hwreg(HW_REG_XCC_ID, 0, 3)
v_lshl_add_u32 v2, v0, 3, {sLC}
v_and_b32 v3, 31, v0
v_lshrrev_b32 v13, 5, v0
v_lshlrev_b32 v13, 11, v13
v_lshl_add_u32 v3, v3, 3, v13
v_add_u32 v3, {sLV}, v3
s_and_b32 {sT0}, {sXCC}, 3
s_lshl_b32 {sT0}, {sT0}, 3
s_lshl_b32 {sT0}, 1, {sT0}
v_mov_b32 v16, {sT0}
s_lshr_b32 {sT1}, {sXCC}, 2
s_lshl_b32 {sT2}, {sX}, 1
s_add_u32 s79, {sT1}, {sT2}
s_lshl_b32 {sT1}, {sT1}, 2
s_lshl_b32 {sT2}, {sX}, 5
s_add_u32 {sT1}, {sT1}, {sT2}
s_add_u32 {sT1}, {sT1}, {sW0}
v_mov_b32 v17, {OOB}
v_writelane_b32 v17, {sT1}, 0
@wait clr0
s_barrier
buffer_atomic_add v16, v17, {DBG}, 0 offen sc1
v_and_b32 v13, 3, v0
v_lshlrev_b32 v13, 6, v13
v_lshrrev_b32 v14, 4, v0
v_lshl_add_u32 v13, v14, 4, v13
v_add_u32 v13, {sOffQ}, v13
s_mul_i32 {sT0}, {sJ}, 192
v_mov_b32 v4, 0x3f803f80
v_mov_b32 v5, 0x3f803f80
v_mov_b32 v6, 0x3f803f80
v_mov_b32 v7, 0x3f803f80
s_mov_b32 exec_lo, 0x77777777
s_mov_b32 exec_hi, 0x77777777
buffer_load_dwordx4 v[4:7], v13, {X0}, {sT0} offen
s_mov_b64 exec, -1""")
        self.sink = "v71"; self.pol = ""
        self.e(self.touch("wqa", 14, False))
        for i in range(8, 24): self.kload(i)
        self.e(self.dma_wq(WQA, 14, first=True))
        for i in range(24, 32): self.kload(i)
        self.wait("cwq")
        self.e(self.tr_w(36, 3, C_WQ))
        self.e("s_waitcnt lgkmcnt(0)")
        self.e(self.qproj_core())
        self.e(self.qp_addr(0))
        self.stamp("qproj")
        for i in range(32, 40): self.kload(i)
        ld = [f"buffer_load_dword v41, v40, {DBG}, 0 offen sc1 #cnt"]
        self.e(f"v_bfe_u32 v40, v0, 1, 3\nv_lshlrev_b32 v40, 5, v40\nv_and_b32 v41, 1, v0\nv_lshl_add_u32 v40, v41, 2, v40\ns_mov_b32 {sCNT}, 0")
        self.e(ld)
        for i in range(40, 48): self.kload(i)
        self.e(f"""@wait cnt
L_cnt_chk:
v_sad_u8 v42, v41, 0, 0
v_add_u32_dpp v42, v42, v42 row_ror:1 {DP}
v_add_u32_dpp v42, v42, v42 row_ror:2 {DP}
v_add_u32_dpp v42, v42, v42 row_ror:4 {DP}
v_add_u32_dpp v42, v42, v42 row_ror:8 {DP}
v_cmp_ne_u32 vcc, 0x100, v42""")
        self.retry(ld, "L_cnt_chk")
        self.e(f"""v_readlane_b32 {sT0}, v41, s79
s_and_b32 {sT1}, {sXCC}, 3
s_lshl_b32 {sT1}, {sT1}, 3
s_lshr_b32 {sT0}, {sT0}, {sT1}
s_and_b32 {sT0}, {sT0}, 0xff
s_cmp_eq_u32 {sT0}, {999 if self.cfg['force_slow'] else 32}
s_cbranch_scc1 L_fast
s_branch L_slow
""")
        self.flush_stubs()

    def code_touch(self, v):
        pc = self.lab("pc")
        return L(f"""s_getpc_b64 s[56:57]
{pc}:
s_lshl_b32 {sB0}, {sW}, 13
v_lshl_add_u32 v{v}, v0, 7, {sB0}
v_min_u32 v{v}, L_end_{self.mode}-{pc}-4, v{v}
v_mov_b32 v{v+1}, s57
v_add_co_u32 v{v}, vcc, s56, v{v}
v_addc_co_u32 v{v+1}, vcc, 0, v{v+1}, vcc
global_load_dword {self.sink}, {vr(v,2)}, off #touch""")

    def body(self, mode):
        self.mode = mode
        self.ist = "" if mode == "fast" else "sc1"
        LA = self.cfg["la"]; self.nret = 0
        self.sink = "v72"
        self.e(f"L_{mode}:")
        self.stamp("mode")
        self.qp_store()
        self.sink = "v71"
        self.e(self.code_touch(44))
        for i in range(48, 64): self.kload(i)
        self.sink = "v72"
        self.e(f"""v_bfe_u32 v73, v0, 3, 1
v_bfe_u32 v74, v0, 1, 2
v_lshl_add_u32 v73, v73, 3, v74
v_lshlrev_b32 v73, 8, v73
v_lshrrev_b32 v74, 4, v0
v_lshl_add_u32 v73, v74, 5, v73
v_and_b32 v74, 1, v0
v_lshl_add_u32 v73, v74, 4, v73""")
        self.e(self.q_prep(0) + self.q_prep2() + self.qk_addr())
        for u in range(LA):
            if 64 - self.cfg["kd"] + 4*u + 3 < 64: self.wait(f"k{64 - self.cfg['kd'] + 4*u + 3}")
            self.vdma(u)
        UQ, UK = 1, 3
        loads = self.q_loads(8)
        for u in range(16):
            self.wait(f"v{u}")
            if u > UK and u % 2 == 0: self.e(f"ds_read_b128 v[74:77], v78 offset:{512 + (u>>1)*64}")
            dst = VRES + 16 * u if u < NRES else 16
            self.e(self.vtr(u, dst))
            if u == UQ: self.e(loads)
            self.e(self.bg(f"s{u}", 48 if u <= UK else (16 if u < NRES else 32)))
            late = (u + LA - 5 >= u)
            if late: self.e("s_waitcnt lgkmcnt(0)")
            if u + LA < 16: self.vdma(u + LA)
            if not late: self.e("s_waitcnt lgkmcnt(0)")
            if u > UK: self.e(self.pvm(u, dst, 74, False))
            if u == UK:
                back = self.lab("qw")
                self.e(f"@wait q\n{back}:")
                self.stamp("q_got")
                rs = self.q_reduce(8, loads, back)
                self.qk(rs)
                self.softmax()
                self.e(self.lsum())
                self.e("ds_read_b128 v[16:19], v78 offset:512\nds_read_b128 v[74:77], v78 offset:576\ns_waitcnt lgkmcnt(0)")
                for uu in range(4): self.e(self.pvm(uu, VRES + 16*uu, 16 if uu < 2 else 74, uu < 2))
                self.stamp("sm_done")
            if u == 8:
                self.e("s_barrier")
                self.e(self.mlcomb(0))
            if u == 8:
                self.e(self.clr_small(16))
        self.sink = "v3"
        self.stamp("pv_done")
        self.o_finish()
        self.oproj(0, True)
        self.e(self.bg("y0", 36, sLC))
        self.mla(1, sLC)
        self.e(self.bg("y1", 36))
        self.qproj_phase(2)
        self.e(self.q_prep(2))
        self.delay("d_q")
        loads = self.q_loads(12)
        self.e(loads)
        self.e(self.q_prep2() + self.qk_addr())
        back = self.lab("qw")
        self.e(f"s_waitcnt vmcnt(0)\n{back}:")
        self.stamp("q_got")
        rs = self.q_reduce(12, loads, back)
        rs += L(f"""v_and_b32 v3, 31, v0
v_lshrrev_b32 v75, 5, v0
v_lshlrev_b32 v75, 11, v75
v_lshl_add_u32 v3, v3, 3, v75
v_add_u32 v3, {sLV}, v3""")
        self.sink = "v74"
        side = sum([self.vtr(u, (u - NRES) * 16, acc=True) for u in range(NRES, 16)], [])
        self.qk(rs, side, self.bg("qk2", 56))
        self.sink = "v3"
        self.softmax()
        self.e("s_waitcnt lgkmcnt(0)")
        self.stamp("sm_done")
        pr = lambda b: 16 + (b & 3) * 4
        pread = lambda b: f"ds_read_b128 {vr(pr(b),4)}, v78 offset:{512 + b*64}"
        for b in range(3): self.e(pread(b))
        ls = self.lsum(); mc = self.mlcomb(2); bgl = self.bg("pv2", 72, sLV)
        nb = -(-len(bgl) // 6)
        for b in range(8):
            mf = []
            for u in (2*b, 2*b+1):
                mf += self.pvm(u, VRES + 16*u if u < NRES else (u - NRES)*16, pr(b), b == 0, acc=(u >= NRES))
            self.e("s_waitcnt lgkmcnt(2)" if b == 0 else "s_waitcnt lgkmcnt(0)")
            if b + 3 < 8: mf.insert(1, pread(b + 3))
            sd = {0: ls, 4: mc[:16], 5: mc[16:32], 6: mc[32:]}.get(b, [])
            if 1 <= b <= 6: sd = sd + bgl[(b-1)*nb:b*nb]
            mf = merge(mf, sd, per=-(-len(sd) // 8) or 1)
            if b == 4: mf = ["s_barrier"] + mf
            self.e(mf)
        self.stamp("pv_done")
        self.o_finish()
        self.oproj(2, True)
        self.e(self.bg("y2", 36, sLV))
        self.mla(3, sLV)
        fin = self.lab("fin")
        self.e(f"""s_sub_u32 {sT0}, {sR}, 24
s_cmp_lt_u32 {sT0}, 6
s_cselect_b32 {sT0}, {sX}, 1
s_or_b32 {sT0}, {sT0}, {sW}
s_cmp_eq_u32 {sT0}, 0
s_cbranch_scc1 {fin}""")
        self.exit()
        self.e(f"{fin}:")
        during = L(f"""v_and_b32 v74, 15, v0
v_lshlrev_b32 v75, 6, v74
v_lshrrev_b32 v73, 4, v0
v_lshl_add_u32 v75, v73, 4, v75
v_mov_b32 v73, {OOB}
v_cmp_gt_u32 vcc, 3, v74
v_cndmask_b32 v75, v73, v75, vcc
s_mul_i32 {sT3}, {sJ}, 192""")
        self.y_gather(3, during, "d_y")
        self.e(f"buffer_store_dwordx4 v[4:7], v75, {OUT}, {sT3} offen")
        self.stamp("done")
        self.exit()
        self.flush_stubs()
        self.e(f"L_end_{mode}:")

    def build(self):
        self.prologue()
        n0 = self.nst; vm0 = list(self.vm)
        self.body("fast")
        self.nst = n0; self.vm = vm0
        self.body("slow")
        if self.stamps:
            self.e(f"""L_dump:
v_lshlrev_b32 v8, 2, v0
s_lshl_b32 {sT0}, s2, 2
s_add_u32 {sT0}, {sT0}, {sW}
s_lshl_b32 {sT0}, {sT0}, 8
s_add_u32 {sT0}, {sT0}, {STAMP0}
buffer_store_dword v1, v8, {WS}, {sT0} offen""")
        self.e("s_endpgm")
        return fix(self.a.text(), verbose=False)

HEADER = open(__file__.rsplit("/", 1)[0] + "/header.txt").read() if "/" in __file__ else open("header.txt").read()

def parse(spec):
    cfg = {}
    if spec and spec != "base":
        for kv in spec.split(","):
            k, v = kv.split("=")
            cfg[k] = v.replace("+", " ") if k.startswith("h_") else int(v)
    return cfg

def make(path, stamps=False, cfg=None):
    g = Gen(stamps, cfg)
    txt = wrap(g.build(), grid=256, block=256, lds=163840, vgpr=512, accum=256, sgpr=102, header=HEADER)
    open(path, "w").write(txt)
    return g.snames

if __name__ == "__main__":
    print(make(sys.argv[1], stamps=int(sys.argv[2]), cfg=parse(sys.argv[3] if len(sys.argv) > 3 else "")))
```
